```python
import torch

def _softmax(x, axis=-1):
    return torch.softmax(x, dim=axis)

def _gelu(x):
    return torch.nn.functional.gelu(x, approximate='tanh')

def _silu(x):
    return torch.nn.functional.silu(x)

def _sigmoid(x):
    return torch.sigmoid(x)

def _layernorm(x, axis=-1, eps=1e-05):
    m = x.mean(dim=axis, keepdim=True)
    v = x.var(dim=axis, keepdim=True, unbiased=False)
    return (x - m) / torch.sqrt(v + eps)

def _scatter_add(tgt, idx, src, axis=0):
    return tgt.clone().index_add_(axis, idx, src)

def _segment_sum(src, seg, n):
    out = torch.zeros((n,) + src.shape[1:], dtype=src.dtype)
    return out.index_add_(0, seg, src)

def _pad(x, pw):
    flat = tuple((v for pair in reversed(pw) for v in pair))
    return torch.nn.functional.pad(x, flat)
kernel_name = 'adaLN_cond__memory_aug_recurrent_mem_tr__mixer_token_mlp__prompt'

def setup_inputs():

    _w = lambda a: (lambda t: t.to(torch.bfloat16) if t.is_floating_point() else t)(torch.as_tensor(a))

    def _A_setup():
        B, S, Dm = (1, 2048, 512)
        H, Dh = (32, 128)
        M, seg = (8, 32)
        seg = min(seg, S)
        S = S // seg * seg
        return {'x': _w((lambda *s: torch.randn(*s, dtype=torch.bfloat16) * 0.05)(B, S, Dm)), 'mem0': _w((lambda *s: torch.randn(*s, dtype=torch.bfloat16) * 0.4)(B, M, Dm)), 'Wq': _w((lambda *s: torch.randn(*s, dtype=torch.bfloat16) * 1.6)(Dm, H, Dh) * Dm ** (-0.5)), 'Wk': _w((lambda *s: torch.randn(*s, dtype=torch.bfloat16) * 1.6)(Dm, H, Dh) * Dm ** (-0.5)), 'Wv': _w((lambda *s: torch.randn(*s, dtype=torch.bfloat16) * 0.4)(Dm, H, Dh) * Dm ** (-0.5)), 'Wo': _w((lambda *s: torch.randn(*s, dtype=torch.bfloat16) * 0.4)(H, Dh, Dm) * (H * Dh) ** (-0.5)), 'seg_len': seg}
    _A_in = _A_setup()

    def _B_setup():
        B, S, D, F = (1, 2048, 512, 1792)
        return {'x': _w((lambda *s: torch.randn(*s, dtype=torch.bfloat16) * 0.05)(B, S, D)), 'w1': _w((lambda *s: torch.randn(*s, dtype=torch.bfloat16) * 0.8)(S, F) * S ** (-0.5)), 'b1': _w((lambda *s: torch.randn(*s, dtype=torch.bfloat16) * 12.8)(F) * 0.02), 'w2': _w((lambda *s: torch.randn(*s, dtype=torch.bfloat16) * 0.2)(F, S) * F ** (-0.5)), 'b2': _w((lambda *s: torch.randn(*s, dtype=torch.bfloat16) * 1.6)(S) * 0.02)}
    _B_in = _B_setup()
    return {'A_x': _A_in['x'], 'A_mem0': _A_in['mem0'], 'A_Wq': _A_in['Wq'], 'A_Wk': _A_in['Wk'], 'A_Wv': _A_in['Wv'], 'A_Wo': _A_in['Wo'], 'A_seg_len': _A_in['seg_len'], 'B_x': _B_in['x'], 'B_w1': _B_in['w1'], 'B_b1': _B_in['b1'], 'B_w2': _B_in['w2'], 'B_b2': _B_in['b2'], 'c': _w((lambda *s: torch.randn(*s, dtype=torch.bfloat16) * 0.1)(1, 512) * 8.0), 'w_mod': _w((lambda *s: torch.randn(*s, dtype=torch.bfloat16) * 0.1)(512, 6 * 512) * 512 ** (-0.5) * 8.0)}

def reference(A_x, A_mem0, A_Wq, A_Wk, A_Wv, A_Wo, A_seg_len, B_x, B_w1, B_b1, B_w2, B_b2, c, w_mod):

    def _A_ref(x, mem0, Wq, Wk, Wv, Wo, seg_len):
        B, S, Dm = x.shape
        H, Dh = (Wq.shape[1], Wq.shape[2])
        M = mem0.shape[1]
        scale = Dh ** (-0.5)
        n_seg = S // seg_len
        L = M + seg_len
        idx = torch.arange(L)
        mask = (idx[:, None] < M) | (idx[:, None] >= idx[None, :])
        mem = mem0
        outs = []
        for s in range(n_seg):
            xs = x[:, s * seg_len:(s + 1) * seg_len, :].clone()
            h = torch.concatenate([mem, xs], axis=1)
            q = torch.einsum('btd,dhe->bhte', h, Wq)
            k = torch.einsum('btd,dhe->bhte', h, Wk)
            v = torch.einsum('btd,dhe->bhte', h, Wv)
            scores = torch.einsum('bhqe,bhke->bhqk', q, k) * scale
            scores = torch.where(mask[None, None], scores, -1000000000.0)
            p = _softmax(scores, axis=-1)
            o = torch.einsum('bhqk,bhke->bhqe', p, v)
            o = torch.einsum('bhte,hed->btd', o, Wo)
            mem = o[:, :M, :].clone()
            outs.append(o[:, M:, :])
        return torch.concatenate(outs, axis=1)

    def _B_ref(x, w1, b1, w2, b2):
        B, S, D = x.shape
        h = _layernorm(x, axis=-1)
        u = torch.einsum('bsd,sf->bdf', h, w1) + b1
        u = _gelu(u)
        y = torch.einsum('bdf,fs->bds', u, w2) + b2
        return (lambda x, *d: x.permute(*d))(y, 0, 2, 1)
    x = A_x
    mod = (_silu(c) @ w_mod).reshape(c.shape[0], 6, 1, -1)
    sa, ca, ga, sb, cb, gb = (mod[:, 0].clone(), mod[:, 1].clone(), mod[:, 2].clone(), mod[:, 3].clone(), mod[:, 4].clone(), mod[:, 5].clone())
    h = _layernorm(x, axis=-1) * (1 + ca) + sa
    x = x + ga * _A_ref(h, A_mem0, A_Wq, A_Wk, A_Wv, A_Wo, A_seg_len)
    h = _layernorm(x, axis=-1) * (1 + cb) + sb
    x = x + gb * _B_ref(h, B_w1, B_b1, B_w2, B_b2)
    return x
```

```python
import re

_REG = re.compile(r'^(-|abs\()?([vas])(?:(\d+)|\[(\d+):(\d+)\])\)?$')


def regs_of(tok):
    tok = tok.strip()
    if tok in ('vcc', 'vcc_lo', 'vcc_hi'):
        return {('vcc', 0)}
    if tok in ('exec', 'exec_lo', 'exec_hi'):
        return {('exec', 0)}
    if tok == 'm0':
        return {('m0', 0)}
    m = _REG.match(tok)
    if not m:
        return set()
    f = m.group(2)
    if m.group(3) is not None:
        return {(f, int(m.group(3)))}
    return {(f, i) for i in range(int(m.group(4)), int(m.group(5)) + 1)}


TRANS = ('v_exp_f32', 'v_log_f32', 'v_rcp_f32', 'v_rsq_f32', 'v_sqrt_f32', 'v_sin_f32', 'v_cos_f32',
         'v_rcp_iflag_f32')


class Ins:
    __slots__ = ('text', 'mn', 'ops', 'kind', 'rd', 'wr', 'A', 'B', 'C', 'passes', 'states', 'wide',
                 'sdata', 'dpp', 'label', 'target')

    def __init__(self, text):
        self.text = text
        t = text.split(';')[0].strip()
        self.label = None
        self.target = None
        self.A = self.B = self.C = set()
        self.rd = set()
        self.wr = set()
        self.passes = 0
        self.states = 1
        self.wide = False
        self.sdata = set()
        self.dpp = False
        if t.endswith(':'):
            self.kind = 'label'
            self.label = t[:-1]
            self.mn = ''
            self.ops = []
            self.states = 0
            return
        if t.startswith('.') or t == '':
            self.kind = 'dir'
            self.mn = ''
            self.ops = []
            self.states = 0
            return
        parts = t.split(None, 1)
        mn = parts[0]
        self.mn = mn
        rest = parts[1] if len(parts) > 1 else ''
        ops = []
        cur = ''
        depth = 0
        for ch in rest:
            if ch in '[(':
                depth += 1
            if ch in '])':
                depth -= 1
            if ch == ',' and depth == 0:
                ops.append(cur.strip())
                cur = ''
            else:
                cur += ch
        if cur.strip():
            ops.append(cur.strip())
        mods = []
        if ops:
            sp = ops[-1].split()
            if len(sp) > 1 and not ops[-1].startswith('hwreg'):
                ops[-1] = sp[0]
                mods = sp[1:]
        self.ops = ops
        R = [regs_of(o) for o in ops]
        allsrc = set().union(*R[1:]) if len(R) > 1 else set()
        if mn.startswith('v_mfma') or mn.startswith('v_smfmac'):
            self.kind = 'mfma'
            self.wr = R[0]
            self.A, self.B = R[1], R[2]
            if mn.startswith('v_smfmac'):
                self.C = R[0]
                self.A = R[1] | R[3]
            else:
                self.C = R[3]
            self.rd = self.A | self.B | self.C
            self.passes = 8 if '32x32' in mn else 4
        elif mn.startswith('v_'):
            self.kind = 'valu'
            self.dpp = '_dpp' in mn or any(m.startswith(('row_', 'quad_perm', 'wave_')) for m in mods)
            if mn.startswith('v_cmp'):
                self.wr = R[0]
                self.rd = allsrc
            elif mn.startswith('v_permlane') and 'swap' in mn:
                self.wr = R[0] | R[1]
                self.rd = R[0] | R[1]
            elif mn.startswith(('v_add_co', 'v_sub_co', 'v_addc_co', 'v_subb_co', 'v_subrev_co')):
                self.wr = R[0] | R[1]
                self.rd = set().union(*R[2:])
            elif mn.startswith(('v_fmac', 'v_dot2c', 'v_pk_fmac')):
                self.wr = R[0]
                self.rd = allsrc | R[0]
            elif mn == 'v_nop':
                pass
            else:
                self.wr = R[0]
                self.rd = allsrc
                if mn.startswith('v_cndmask') and len(ops) == 3:
                    self.rd |= {('vcc', 0)}
                if self.dpp:
                    self.rd |= R[0]
        elif mn.startswith('ds_'):
            self.kind = 'lds'
            if mn.startswith(('ds_read', 'ds_bpermute', 'ds_permute', 'ds_swizzle')):
                self.wr = R[0]
                self.rd = allsrc
            else:
                self.rd = set().union(*R)
        elif mn.startswith(('global_', 'buffer_', 'flat_')):
            self.kind = 'vmem'
            if mn in ('buffer_wbl2', 'buffer_inv'):
                pass
            elif 'load' in mn:
                if 'lds' in mods or '_lds_' in mn:
                    self.rd = set().union(*R) | {('m0', 0)}
                else:
                    self.wr = R[0]
                    self.rd = allsrc
            elif 'store' in mn:
                self.rd = set().union(*R)
                d = R[1] if mn.startswith(('global_', 'flat_')) else R[0]
                if mn.endswith(('x3', 'x4')):
                    self.wide = True
                    self.sdata = d
            elif 'atomic' in mn:
                self.rd = set().union(*R)
                if 'sc0' in mods:
                    self.wr = R[0]
                    if mn.startswith('global_'):
                        self.rd = allsrc
        elif mn.startswith('s_'):
            self.kind = 'salu'
            if mn == 's_nop':
                self.states = int(ops[0], 0) + 1
            elif mn.startswith(('s_cbranch', 's_branch')):
                self.kind = 'branch'
                self.target = ops[0]
                if 'vcc' in mn:
                    self.rd = {('vcc', 0)}
            elif mn.startswith(('s_cmp', 's_waitcnt', 's_barrier', 's_sleep', 's_setprio', 's_endpgm',
                                's_bitcmp', 's_setreg')):
                self.rd = set().union(*R) if R else set()
            elif mn.startswith(('s_load', 's_buffer_load', 's_memtime', 's_memrealtime', 's_atomic')):
                self.kind = 'smem'
                self.wr = R[0]
                self.rd = allsrc
            else:
                self.wr = R[0] if R else set()
                self.rd = allsrc
                if 'saveexec' in mn:
                    self.wr = self.wr | {('exec', 0)}
        else:
            raise ValueError('unknown instruction: ' + text)


def _vec(s):
    return {r for r in s if r[0] in 'va'}


def _sc(s):
    return {r for r in s if r[0] in ('s', 'vcc')}


def need_states(p, c):
    n = 0
    if p.kind == 'valu':
        w = _vec(p.wr)
        if w:
            if c.kind == 'mfma' and (w & c.rd):
                n = max(n, 2)
            if c.kind == 'valu':
                if c.mn.startswith('v_permlane') and (w & c.rd):
                    n = max(n, 2)
                if c.dpp and (w & c.rd):
                    n = max(n, 2)
                if c.mn.startswith(('v_readlane', 'v_readfirstlane')) and (w & c.rd):
                    n = max(n, 1)
                if p.mn.startswith(TRANS) and not c.mn.startswith(TRANS) and (w & (c.rd | c.wr)):
                    n = max(n, 1)
            if p.mn.startswith(TRANS) and c.kind in ('mfma', 'lds', 'vmem') and (w & c.rd):
                n = max(n, 2)
        sw = _sc(p.wr)
        if sw:
            if c.kind == 'valu' and (sw & c.rd):
                n = max(n, 4 if c.mn.startswith(('v_readlane', 'v_writelane')) else 2)
            if c.kind == 'vmem' and (sw & c.rd):
                n = max(n, 5)
            if c.kind in ('salu', 'branch', 'smem') and (sw & c.rd):
                n = max(n, 1)
        if ('exec', 0) in p.wr:
            n = max(n, 5)
    if p.kind == 'mfma':
        d = p.wr
        big = p.passes == 8
        if c.kind == 'mfma':
            if d & (c.A | c.B):
                n = max(n, 12 if big else 8)
            if d & c.C:
                if d == c.C and c.passes == p.passes:
                    pass
                else:
                    n = max(n, 10 if big else 6)
            elif d & c.wr:
                n = max(n, 10 if big else 6)
        elif c.kind in ('valu', 'lds', 'vmem'):
            if d & (c.rd | c.wr):
                n = max(n, 12 if big else 8)
        if c.kind == 'valu' and (p.C & c.wr):
            n = max(n, 7 if big else 3)
    if p.kind == 'vmem' and p.wide:
        if p.sdata & c.wr:
            n = max(n, 2 if c.kind == 'valu' else 1)
    if p.kind == 'salu' and ('m0', 0) in p.wr and c.kind == 'vmem' and ('m0', 0) in c.rd:
        n = max(n, 1)
    return n


class Asm:
    WINDOW = 16

    def __init__(self):
        self.ins = []
        self.labels = {}
        self.nlabel = 0
        self.nops_added = 0
        self.fwd = {}
        self.alts = []

    def raw(self, text):
        self.ins.append(Ins('.raw'))
        self.ins[-1].text = text

    def _pad_for(self, c, hist):
        dist = 0
        pad = 0
        for p in reversed(hist):
            if p.kind in ('label', 'dir'):
                continue
            n = need_states(p, c)
            if n > dist:
                pad = max(pad, n - dist)
            dist += p.states
            if dist >= self.WINDOW:
                break
        return pad

    def e(self, text):
        for line in text.strip().split('\n'):
            line = line.strip()
            if not line:
                continue
            c = Ins(line)
            if c.kind == 'label':
                self.labels[c.label] = len(self.ins)
                self.ins.append(c)
                for h in self.fwd.pop(c.label, []):
                    self.alts.append([h, 0])
                continue
            if c.kind != 'dir':
                pad = self._pad_for(c, self.ins[-40:])
                for h, _ in self.alts:
                    pad = max(pad, self._pad_for(c, h))
                while pad > 0:
                    k = min(pad, 16)
                    nop = Ins('s_nop %d' % (k - 1))
                    self.ins.append(nop)
                    for a in self.alts:
                        a[0].append(nop)
                        a[1] += k
                    self.nops_added += k
                    pad -= k
                for a in self.alts:
                    a[0].append(c)
                    a[1] += c.states
                self.alts = [a for a in self.alts if a[1] < self.WINDOW]
            self.ins.append(c)
            if c.kind == 'branch':
                if c.target in self.labels:
                    self._check_backedge(c.target)
                else:
                    self.fwd.setdefault(c.target, []).append(list(self.ins[-40:]))

    def _check_backedge(self, label):
        start = self.labels[label]
        hist = list(self.ins[-40:])
        n = 0
        for c in self.ins[start:start + 40]:
            if c.kind in ('label', 'dir'):
                continue
            pad = self._pad_for(c, hist)
            if pad > 0:
                raise RuntimeError('back-edge hazard at %s: %s needs %d more states' % (label, c.text, pad))
            hist.append(c)
            n += c.states
            if n >= self.WINDOW:
                break

    def fence(self):
        self.ins.append(Ins('s_nop 15'))

    def newlabel(self, base='L'):
        self.nlabel += 1
        return '%s_%d' % (base, self.nlabel)

    def text(self):
        out = []
        for i in self.ins:
            if i.kind == 'label':
                out.append(i.text)
            else:
                out.append('    ' + i.text)
        return '\n'.join(out) + '\n'
```

```python
import struct
from asmlib import Asm

NAME = 'adaLN_cond__memory_aug_recurrent_mem_tr__mixer_token_mlp__prompt'

P_X, P_MEM0, P_WQ, P_WK, P_WV, P_WO, P_SEG, P_BX, P_W1, P_B1, P_W2, P_B2, P_C, P_WMOD, P_OUT, P_DBG, P_WS = range(17)
SIZES = {P_X: 2048 * 512 * 2, P_MEM0: 8 * 512 * 2, P_WQ: 512 * 4096 * 2, P_WK: 512 * 4096 * 2,
         P_WV: 512 * 4096 * 2, P_WO: 4096 * 512 * 2, P_W1: 2048 * 1792 * 2, P_B1: 1792 * 2,
         P_W2: 1792 * 2048 * 2, P_B2: 2048 * 2, P_C: 1024, P_WMOD: 512 * 3072 * 2,
         P_OUT: 2048 * 512 * 2, P_DBG: 256, P_WS: 1 << 28}


def pbase(i):
    return 16 + 2 * i


WS_FLAGS = 0x0000000
WS_MODP = 0x0010000
WS_MODF = 0x0030000
WS_PART = 0x0040000
WS_MEM = 0x00C0000
WS_H = 0x0100000
WS_X1 = 0x0300000
WS_H2 = 0x0500000
WS_U = 0x0700000
WS_K = 0x1000000
WS_V = 0x2000000
WS_Q = 0x3000000
WS_KM = 0x4000000
WS_VM = 0x4800000
WS_OP = 0x5000000


def f32(x):
    return '0x%08x' % struct.unpack('<I', struct.pack('<f', x))[0]


def srd(a, dst, ptr, size=None):
    b = pbase(ptr)
    a.e('s_mov_b32 s%d, s%d' % (dst, b))
    a.e('s_and_b32 s%d, s%d, 0xffff' % (dst + 1, b + 1))
    a.e('s_mov_b32 s%d, 0x%x' % (dst + 2, SIZES[ptr] if size is None else size))
    a.e('s_mov_b32 s%d, 0x00020000' % (dst + 3))


def load_ptrs(a):
    a.e('''s_load_dwordx16 s[16:31], s[0:1], 0
    s_load_dwordx16 s[32:47], s[0:1], 64
    s_load_dwordx2 s[48:49], s[0:1], 128
    s_waitcnt lgkmcnt(0)''')


S_WS = 52


def vr(b, n):
    return 'v[%d:%d]' % (b, b + n - 1) if n > 1 else 'v%d' % b


def ar(b, n):
    return 'a[%d:%d]' % (b, b + n - 1) if n > 1 else 'a%d' % b


def sr(b, n):
    return 's[%d:%d]' % (b, b + n - 1) if n > 1 else 's%d' % b


def xr(r, n):
    return vr(r[1], n) if r[0] == 'v' else ar(r[1], n)


def wave_id(a, sdst, vtmp):
    a.e('v_lshrrev_b32 v%d, 6, v0' % vtmp)
    a.e('v_readfirstlane_b32 s%d, v%d' % (sdst, vtmp))
    a.e('s_nop 3')


def xl_reduce(a, op, t0, t1, steps):
    for s in steps:
        a.e('v_mov_b32 v%d, v%d' % (t1, t0))
        a.e('v_permlane%d_swap_b32 v%d, v%d' % (s, t0, t1))
        a.e('%s v%d, v%d, v%d' % (op, t0, t0, t1))


def row_reduce_add(a, t0, t1):
    for r in (8, 4, 2, 1):
        a.e('v_mov_b32_dpp v%d, v%d row_ror:%d row_mask:0xf bank_mask:0xf' % (t1, t0, r))
        a.e('v_add_f32 v%d, v%d, v%d' % (t0, t0, t1))
```

```python
import sys, os
sys.path.insert(0, os.path.dirname(os.path.abspath(__file__)))
from common import *
import roles1, role_r

HEADER = open('cdna_kernels/%s.s.ref' % NAME).read().split('; Override')[0]

def kernel_begin(a, name, ntasks):
    a.raw('.globl %s' % name)
    a.raw('.p2align 8')
    a.raw('.type %s,@function' % name)
    a.e('%s:' % name)
    a.e('s_cmp_ge_u32 s2, %d' % ntasks)
    a.e('s_cbranch_scc1 %s_exit' % name)
    load_ptrs(a)
    srd(a, S_WS, P_WS)
    a.e('s_mov_b32 s3, s2')

def kernel_end(a, name):
    a.e('%s_exit:' % name)
    a.e('s_endpgm')

def descriptor(name, vgpr=512, acc=256):
    return '''.amdhsa_kernel %s
  .amdhsa_next_free_vgpr %d
  .amdhsa_next_free_sgpr 102
  .amdhsa_accum_offset %d
  .amdhsa_group_segment_fixed_size 0
  .amdhsa_kernarg_size 136
  .amdhsa_user_sgpr_count 2
  .amdhsa_user_sgpr_kernarg_segment_ptr 1
  .amdhsa_system_sgpr_workgroup_id_x 1
.end_amdhsa_kernel
''' % (name, vgpr, acc)

def assign_role(a):
    srd(a, 60, P_DBG)
    wave_id(a, 4, 1)
    l_skip = a.newlabel('AR_skip'); l_wt = a.newlabel('AR_wt'); l_st = a.newlabel('AR_st')
    a.e('''s_cmp_lg_u32 s4, 0
    s_cbranch_scc1 {skip}
    s_mov_b64 exec, 1
    s_getreg_b32 s8, hwreg(HW_REG_XCC_ID, 0, 4)
    v_mov_b32 v2, 0
    s_cmp_lg_u32 s8, 0
    s_cbranch_scc1 {wt}
    v_mov_b32 v1, 1
    buffer_atomic_add v1, v2, s[60:63], 0 offen offset:{XT} sc0
    s_waitcnt vmcnt(0)
    v_readfirstlane_b32 s9, v1
    s_or_b32 s10, s9, 0x100
    s_cmp_lt_u32 s9, 32
    s_cbranch_scc1 {st}
    {wt}:
    v_mov_b32 v1, 1
    buffer_atomic_add v1, v2, s[60:63], 0 offen offset:{WT} sc0
    s_waitcnt vmcnt(0)
    v_readfirstlane_b32 s9, v1
    s_add_u32 s10, s9, 0x1000
    s_cmp_lt_u32 s9, 224
    s_cbranch_scc1 {st}
    s_sub_u32 s10, 255, s9          ; 31 - (wt - 224)
    s_and_b32 s10, s10, 31
    {st}:
    v_mov_b32 v1, s10
    ds_write_b32 v2, v1
    s_waitcnt lgkmcnt(0)
    s_mov_b64 exec, -1
    {skip}:
    s_barrier
    v_mov_b32 v2, 0
    ds_read_b32 v1, v2
    s_waitcnt lgkmcnt(0)
    v_readfirstlane_b32 s3, v1
    s_barrier
    s_lshr_b32 s76, s3, 8
    s_and_b32 s76, s76, 1
    '''.format(skip=l_skip, wt=l_wt, st=l_st, XT=role_r.DBG_XT, WT=role_r.DBG_WT))

def build_v1(upto=99):
    a = Asm()
    launches = []
    descs = []
    def add(name, grid, lds, body, vgpr=512, acc=256):
        kernel_begin(a, name, grid)
        body(name)
        kernel_end(a, name)
        launches.append('; @launch kernel=%s grid=(%d,1,1) block=(256,1,1) lds=%d' % (name, grid, lds))
        descs.append(descriptor(name, vgpr, acc))
    add('mod_kernel', 192, 8192, lambda n: roles1.role_mod(a), 64, 64)
    add('l1_kernel', 64, 8192, lambda n: roles1.role_l1(a), 256, 256)
    def p_body(n):
        a.e('''s_cmp_ge_u32 s3, 96
        s_cselect_b32 s90, 32, 0
        s_cselect_b32 s4, 96, 0
        s_sub_u32 s3, s3, s4
        s_add_u32 s91, s90, 32''')
        roles1.role_p(a)
    add('p_kernel', 192, 131072, p_body)
    def r_body(n):
        assign_role(a)
        a.e('s_cmp_ge_u32 s3, 0x1000')
        a.e('s_cbranch_scc1 %s_exit' % n)
        a.e('s_and_b32 s3, s3, 31')
        role_r.role_r(a, n + '_exit')
    if upto >= 4:
        add('r_kernel', 256, 163840, r_body)
    if upto >= 5:
        import roles2
        roles2.add_v1(a, add)
    txt = HEADER + '\n'.join(launches) + '\n.amdgcn_target "amdgcn-amd-amdhsa--gfx950"\n.text\n' + a.text()
    txt += '.section .rodata,"a"\n' + ''.join('.p2align 6\n' + d for d in descs)
    return txt, a

if __name__ == '__main__':
    role_r.PROF = bool(os.environ.get('PROF'))
    upto = int(sys.argv[1]) if len(sys.argv) > 1 else 99
    out = sys.argv[2] if len(sys.argv) > 2 else 'cdna_kernels/%s.s' % NAME
    txt, a = build_v1(upto)
    open(out, 'w').write(txt)
    print('wrote', out, len(txt), 'bytes; nops added', a.nops_added)
```

```python
from common import *

CEXP = 128 ** -0.5 * 1.4426950408889634
SPIN_MAX = 1 << 21

A = 0
STG = 32
QACC = 56
KACC = 64
KX0 = 72
VACC = 80
VX = 88
OX = 96
SM = 104
L16, ATR, QTR, QW, OW, MW, PST, MST, VB, IDX, SELE, SELO, SELI, MX, LX, T0, T1, AL, NM, RL = range(108, 128)
QOP = 240
L_QT, L_KT, L_OB, L_KX, L_W = 0, 2048, 4096, 8192, 16384
DBG_XT, DBG_WT, DBG_RINIT = 0, 4, 8


def wq(t, nt):
    assert t >= 1
    return ar((2 * (t - 1) + nt) * 8, 8)


def wk(t, nt):
    return ar(112 + (2 * t + nt) * 8, 8)


def wo_base(tt, t2):
    return 128 + ((t2 * 4 + (tt >> 1)) * 2 + (tt & 1)) * 8


class Trk:
    def __init__(self, a):
        self.a = a
        self.nl = 0
        self.nv = 0

    def lds(self, t):
        self.a.e(t)
        self.nl += 1
        return self.nl

    def vm(self, t):
        self.a.e(t)
        self.nv += 1
        return self.nv

    def wl(self, i):
        self.a.e('s_waitcnt lgkmcnt(%d)' % min(15, self.nl - i))

    def wv(self, i):
        self.a.e('s_waitcnt vmcnt(%d)' % min(63, self.nv - i))


def r_setup(a):
    wave_id(a, 4, 1)
    a.e('''v_and_b32 v1, 63, v0             ; lane
    v_and_b32 v2, 15, v1             ; n
    v_lshrrev_b32 v3, 4, v1          ; g
    v_lshrrev_b32 v4, 2, v2          ; r
    v_and_b32 v5, 3, v2              ; c
    v_lshrrev_b32 v6, 1, v3          ; g>>1
    v_and_b32 v7, 1, v3              ; g&1
    v_lshlrev_b32 v{L16}, 4, v1
    ; ATR = 16*(32(g>>1) + 8(g&1) + 4(r>>1) + (r&1) + 2(c>>1)) + 8(c&1)
    v_lshlrev_b32 v8, 5, v6
    v_lshl_add_u32 v8, v7, 3, v8
    v_lshrrev_b32 v9, 1, v4
    v_lshl_add_u32 v8, v9, 2, v8
    v_and_b32 v9, 1, v4
    v_add_u32 v8, v8, v9
    v_lshrrev_b32 v9, 1, v5
    v_lshl_add_u32 v8, v9, 1, v8
    v_and_b32 v10, 1, v5             ; c&1
    v_lshlrev_b32 v8, 4, v8
    v_lshl_add_u32 v{ATR}, v10, 3, v8
    ; QTR = 16*(16(g>>1) + 4(g&1) + r) + 8(c&1)
    v_lshlrev_b32 v8, 4, v6
    v_lshl_add_u32 v8, v7, 2, v8
    v_add_u32 v8, v8, v4
    v_lshlrev_b32 v8, 4, v8
    v_lshl_add_u32 v{QTR}, v10, 3, v8
    ; QW = (32w + 16(g>>1) + n)*16 + 8(g&1)
    s_lshl_b32 s6, s4, 5
    v_lshl_add_u32 v8, v6, 4, v2
    v_add_u32 v8, s6, v8
    v_lshlrev_b32 v8, 4, v8
    v_lshl_add_u32 v{QW}, v7, 3, v8
    ; OW = 4096 + (w>>1)*1024 + (32(w&1) + 8(g>>1) + (n&7))*16 + 8(g&1)
    s_lshl_b32 s6, s4, 9             ; (w>>1)*1024 + (w&1)*512 = w*512
    s_add_u32 s6, s6, {L_OB}
    v_and_b32 v8, 7, v2
    v_lshl_add_u32 v8, v6, 3, v8
    v_lshlrev_b32 v8, 4, v8
    v_lshl_add_u32 v8, v7, 3, v8
    v_add_u32 v{OW}, s6, v8
    ; MW = 2048w + 16 l
    s_lshl_b32 s6, s4, 11
    v_add_u32 v{MW}, s6, v{L16}
    ; PST = (g>>1)*32768 + w*8192 + 16n + 8(g&1)
    s_lshl_b32 s6, s4, 13
    v_lshlrev_b32 v8, 15, v6
    v_lshl_add_u32 v8, v2, 4, v8
    v_lshl_add_u32 v8, v7, 3, v8
    v_add_u32 v{PST}, s6, v8
    ; MST = 16n + 8g (g<2) else huge
    v_lshlrev_b32 v8, 4, v2
    v_lshl_add_u32 v8, v3, 3, v8
    v_lshl_add_u32 v{MST}, v6, 30, v8
    ; VB = 16384 + 36864 w + 16 l
    s_mul_i32 s6, s4, 36864
    s_add_u32 s6, s6, {L_W}
    v_add_u32 v{VB}, s6, v{L16}
    ; IDX
    v_mov_b32 v8, 0x4444
    v_mov_b32 v9, 0xeeee
    v_cmp_gt_u32 vcc, 8, v2
    v_cndmask_b32 v{IDX}, v9, v8, vcc
    ; SEL: X = c<3 ? 0x3f80 : 0x3f800000 ; SELE = n<4 ? X : 0 ; SELO = 4<=n<8 ? X : 0
    v_mov_b32 v8, 0x3f80
    v_mov_b32 v9, 0x3f800000
    v_cmp_gt_u32 vcc, 3, v5
    v_cndmask_b32 v11, v9, v8, vcc
    ; index nibble: c<3 ? (c | 3<<2) : (0 | 3<<2)
    v_cndmask_b32 v12, 0, v5, vcc
    v_or_b32 v12, 12, v12
    v_mul_u32_u24 v{SELI}, 0x1111, v12
    v_cmp_eq_u32 vcc, 0, v4
    v_cndmask_b32 v{SELE}, 0, v11, vcc
    v_cmp_eq_u32 vcc, 1, v4
    v_cndmask_b32 v{SELO}, 0, v11, vcc
    '''.format(**globals()))


def r_load_weights(a):
    a.e('''; raw voffset QKV: (16w + g)*8192 + n*16 + h*256   (rows 64t + 16w + 4i + g)
    s_lshl_b32 s6, s4, 4
    v_add_u32 v8, s6, v3
    v_lshlrev_b32 v8, 13, v8
    v_lshl_add_u32 v8, v2, 4, v8
    s_lshl_b32 s6, s3, 8
    v_add_u32 v{MX}, s6, v8
    ; raw voffset Wo: (16w + g)*1024 + n*16 + h*131072
    s_lshl_b32 s6, s4, 4
    v_add_u32 v8, s6, v3
    v_lshlrev_b32 v8, 10, v8
    v_lshl_add_u32 v8, v2, 4, v8
    s_lshl_b32 s6, s3, 17
    v_add_u32 v{LX}, s6, v8
    ; tr QKV: (8*bs(g) + r)*256 + (32w + 4c)*2 ; bs(g) = 2(g&1) + (g>>1)
    v_lshl_add_u32 v8, v7, 1, v6
    v_lshl_add_u32 v8, v8, 3, v4
    v_lshlrev_b32 v8, 8, v8
    v_lshl_add_u32 v8, v5, 3, v8
    s_lshl_b32 s6, s4, 6
    v_add_u32 v{T0}, s6, v8
    ; tr Wo: (16(g>>1) + 4(g&1) + 8(r>>1) + (r&1))*256 + (16w + 4c)*2
    v_lshlrev_b32 v8, 4, v6
    v_lshl_add_u32 v8, v7, 2, v8
    v_lshrrev_b32 v9, 1, v4
    v_lshl_add_u32 v8, v9, 3, v8
    v_and_b32 v9, 1, v4
    v_add_u32 v8, v8, v9
    v_lshlrev_b32 v8, 8, v8
    v_lshl_add_u32 v8, v5, 3, v8
    s_lshl_b32 s6, s4, 5
    v_add_u32 v{T1}, s6, v8
    ; stage write addr: w*4096 + 16 l
    s_lshl_b32 s6, s4, 12
    v_add_u32 v{AL}, s6, v{L16}
    '''.format(**globals()))
    srd(a, 56, P_WQ)
    srd(a, 64, P_WK)
    srd(a, 68, P_WV)
    srd(a, 72, P_WO)
    chunks = []
    for t in range(1, 8):
        chunks.append(('q', t, ('a', (t - 1) * 16), None))
    for t in range(8):
        chunks.append(('k', t, ('a', 112 + t * 16), None))
    for t2 in range(2):
        for cq in range(4):
            chunks.append(('o', (t2, cq), ('v', 128 + (t2 * 4 + cq) * 16), None))
    nreg = len(chunks)
    ldsd = [('q', 0, 32768)] + [('v', t, 4096 * t) for t in range(8)]
    for i, (k, t, dst) in enumerate(ldsd):
        chunks.append((k, t, ('v', 8 + (i % 6) * 16), dst))
    issued = []
    cnt = [0]

    def issue(c):
        k, t, rb, _ = chunks[c]
        for i in range(4):
            if k == 'o':
                t2, cq = t
                so = (64 * t2 + 4 * i) * 1024 + cq * 256
                s, vo = 72, LX
            else:
                so = (64 * t + 4 * i) * 8192
                s, vo = {'q': 56, 'k': 64, 'v': 68}[k], MX
            a.e('s_mov_b32 s6, %d' % so)
            a.e('buffer_load_dwordx4 %s, v%d, %s, s6 offen' % (xr((rb[0], rb[1] + 4 * i), 4), vo, sr(s, 4)))
            cnt[0] += 1
        issued.append(cnt[0])

    AHEAD = 14
    nxt = 0
    while nxt < AHEAD:
        issue(nxt)
        nxt += 1
    for c, (k, t, rb, dst) in enumerate(chunks):
        a.e('s_waitcnt vmcnt(%d)' % (cnt[0] - issued[c]))
        if dst is None:
            stg = L_W + (c & 1) * 16384
        else:
            stg = 0
            a.e('s_barrier')
        for i in range(4):
            a.e('ds_write_b128 v%d, %s offset:%d' % (AL, xr((rb[0], rb[1] + 4 * i), 4), stg + 1024 * i))
        a.e('s_waitcnt lgkmcnt(0)')
        a.e('s_barrier')
        for nt in range(2):
            for p in range(4):
                if k == 'o':
                    off = (32 * (p >> 1) + 2 * (p & 1)) * 256 + nt * 128
                    ad = T1
                else:
                    off = (32 * (p >> 1) + 4 * (p & 1)) * 256 + nt * 32
                    ad = T0
                a.e('ds_read_b64_tr_b16 %s, v%d offset:%d' % (xr((rb[0], rb[1] + 8 * nt + 2 * p), 2), ad, stg + off))
        if dst is not None:
            a.e('s_waitcnt lgkmcnt(0)')
            for i in range(4):
                a.e('ds_write_b128 v%d, %s offset:%d' % (VB, xr((rb[0], rb[1] + 4 * i), 4), dst + 1024 * i))
            a.e('s_waitcnt lgkmcnt(0)')
        while nxt < len(chunks) and nxt <= c + AHEAD and (nxt < nreg + 6 or nxt - 6 <= c):
            issue(nxt)
            nxt += 1
    a.e('s_waitcnt lgkmcnt(0)')
    a.e('s_barrier')


def r_init_exchange(a):
    a.e('''v_mov_b32 v8, -1
    v_mov_b32 v9, -1
    v_mov_b32 v10, -1
    v_mov_b32 v11, -1
    s_lshl_b32 s6, s3, 13            ; h*8192
    s_lshl_b32 s7, s4, 11            ; w*2048
    s_add_u32 s6, s6, s7
    s_add_u32 s6, s6, %d
    buffer_store_dwordx4 v[8:11], v%d, s[52:55], s6 offen sc1
    buffer_store_dwordx4 v[8:11], v%d, s[52:55], s6 offen offset:1024 sc1
    s_add_u32 s6, s6, 262144
    buffer_store_dwordx4 v[8:11], v%d, s[52:55], s6 offen sc1
    buffer_store_dwordx4 v[8:11], v%d, s[52:55], s6 offen offset:1024 sc1
    s_lshl_b32 s6, s3, 8
    s_add_u32 s6, s6, %d
    buffer_store_dwordx2 v[8:9], v%d, s[52:55], s6 offen sc1
    s_add_u32 s6, s6, 8192
    buffer_store_dwordx2 v[8:9], v%d, s[52:55], s6 offen sc1
    s_add_u32 s6, s6, 8192
    buffer_store_dwordx2 v[8:9], v%d, s[52:55], s6 offen sc1
    s_waitcnt vmcnt(0)
    s_barrier
    ''' % (WS_PART, L16, L16, L16, L16, WS_MEM, MST, MST, MST))
    lab = a.newlabel('R_noinc')
    a.e('''s_cmp_lg_u32 s4, 0
    s_cbranch_scc1 %s
    s_mov_b64 exec, 1
    v_mov_b32 v8, 1
    v_mov_b32 v9, %d
    buffer_atomic_add v8, v9, s[60:63], 0 offen
    s_mov_b64 exec, -1
    %s:''' % (lab, DBG_RINIT, lab))


def spin_guard(a, abort):
    a.e('s_add_u32 s79, s79, 1')
    a.e('s_cmp_gt_u32 s79, %d' % SPIN_MAX)
    a.e('s_cbranch_scc1 %s' % abort)


def r_load_mem0(a):
    srd(a, 56, P_MEM0)
    a.e('''v_lshlrev_b32 v8, 5, v0
    buffer_load_dwordx4 v[12:15], v8, s[56:59], 0 offen
    buffer_load_dwordx4 v[16:19], v8, s[56:59], 0 offen offset:16
    v_and_b32 v9, 31, v0
    v_lshlrev_b32 v9, 8, v9          ; d0*16
    v_lshrrev_b32 v10, 5, v0
    v_lshl_add_u32 v9, v10, 1, v9    ; + token*2
    s_waitcnt vmcnt(0)''')
    for i in range(8):
        a.e('ds_write_b16 v9, v%d offset:%d' % (12 + i, 32 * i))
        a.e('ds_write_b16_d16_hi v9, v%d offset:%d' % (12 + i, 32 * i + 16))


PROF = False
WS_PROF = 0x0A00000


def stamp(a, i):
    if not PROF:
        return
    a.e('s_memtime s[100:101]')
    a.e('s_waitcnt lgkmcnt(0)')
    a.e('s_mov_b32 s%d, s100' % (64 + i))


def stamp_flush(a):
    if not PROF:
        return
    a.e('''s_lshl_b32 s100, s3, 2
    s_add_u32 s100, s100, s4
    s_lshl_b32 s100, s100, 6
    s_add_u32 s100, s100, s5
    s_lshl_b32 s100, s100, 6
    s_add_u32 s100, s100, %d
    v_mov_b32 v%d, 0''' % (WS_PROF, T1))
    for i in range(12):
        a.e('v_mov_b32 v%d, s%d' % (T0, 64 + i))
        a.e('buffer_store_dword v%d, v%d, s[52:55], s100 offen offset:%d' % (T0, T1, 4 * i))


def smf(acc, areg, breg):
    return 'v_smfmac_f32_16x16x64_bf16 %s, %s, %s, v%d' % (vr(acc, 4), areg, breg, IDX)


def r_loop(a, fast, abort, done, hooks):
    sc = '' if fast else ' sc1'
    top = a.newlabel('R_top')
    a.e('%s:' % top)
    stamp(a, 0)
    k = Trk(a)
    aid = {}
    for t in range(8):
        for rd in range(2):
            aid[t] = k.lds('ds_read_b64_tr_b16 %s, v%d offset:%d' % (vr(A + 4 * t + 2 * rd, 2), ATR, 1024 * t + 256 * rd))
    vbuf = lambda i: STG + 8 * ((i + 2) % 3)
    vid = {}

    def vload(i):
        if i >= 16 or i in vid:
            return
        k.lds('ds_read_b128 %s, v%d offset:%d' % (vr(vbuf(i), 4), VB, 2048 * i))
        vid[i] = k.lds('ds_read_b128 %s, v%d offset:%d' % (vr(vbuf(i) + 4, 4), VB, 2048 * i + 1024))

    a.e('''s_lshl_b32 s6, s5, 18            ; s*32*8192
    s_add_u32 s6, s6, s80            ; + h*8192 + w*2048
    s_add_u32 s7, s6, %d             ; vx(s) source
    s_add_u32 s8, s6, %d             ; kx(s+1) source
    ''' % (WS_V, WS_K + (1 << 18)))
    hooks['top'](a, k)
    for t in range(8):
        k.wl(aid[t])
        if t == 7:
            a.e('s_barrier')
        for nt in range(2):
            b = vr(STG + 8 * nt, 8) if t == 0 else wq(t, nt)
            a.e(smf(QACC + 4 * nt, vr(A + 4 * t, 4), b))
        if t == 0:
            vload(0)
        if t == 1:
            vload(1)
            vload(2)
    stamp(a, 1)
    kxregs = [KX0, KX0 + 4, OX, OX + 4, SM]
    kxid = {}

    def kxload(f):
        kxid[f] = k.lds('ds_read_b128 %s, v%d offset:%d' % (vr(kxregs[f % 5], 4), L16, L_KX + 1024 * f))

    fill = {i: [] for i in range(16)}
    fill[0] = [lambda: k.vm('buffer_load_dwordx4 %s, v%d, s[52:55], s7 offen sc1' % (vr(VX, 4), L16)),
               lambda: k.vm('buffer_load_dwordx4 %s, v%d, s[52:55], s7 offen offset:1024 sc1' % (vr(VX + 4, 4), L16))]
    fill[1] = [lambda: kxload(0), lambda: kxload(1)]
    fill[2] = [lambda: kxload(2), lambda: kxload(3)]
    fill[3] = [lambda: kxload(4), 'v_permlane32_swap_b32 v%d, v%d' % (QACC, QACC + 4)]
    fill[4] = ['v_permlane32_swap_b32 v%d, v%d' % (QACC + 1, QACC + 5), 'v_permlane32_swap_b32 v%d, v%d' % (QACC + 2, QACC + 6)]
    fill[5] = ['v_permlane32_swap_b32 v%d, v%d' % (QACC + 3, QACC + 7), 'v_add_f32 v%d, v%d, v%d' % (QACC, QACC, QACC + 4)]
    fill[6] = ['v_add_f32 v%d, v%d, v%d' % (QACC + 1, QACC + 1, QACC + 5), 'v_add_f32 v%d, v%d, v%d' % (QACC + 2, QACC + 2, QACC + 6)]
    fill[7] = ['v_add_f32 v%d, v%d, v%d' % (QACC + 3, QACC + 3, QACC + 7), 'v_cvt_pk_bf16_f32 v%d, v%d, v%d' % (QACC, QACC, QACC + 1)]
    st = {}
    fill[8] = ['v_cvt_pk_bf16_f32 v%d, v%d, v%d' % (QACC + 1, QACC + 2, QACC + 3),
               lambda: st.__setitem__('qw', k.lds('ds_write_b64 v%d, %s offset:%d' % (QW, vr(QACC, 2), L_QT)))]
    fill[10] = [lambda: k.wl(st['qw']), 's_barrier']
    qid = {}

    def qread(ks):
        for jj in range(2):
            qid[ks] = k.lds('ds_read_b64_tr_b16 %s, v%d offset:%d' % (ar(QOP + 4 * ks + 2 * jj, 2), QTR, L_QT + 512 * ks + 128 * jj))

    fill[11] = [lambda: qread(0)]
    fill[12] = [lambda: qread(1)]
    fill[13] = [lambda: qread(2)]
    fill[14] = [lambda: qread(3)]

    def run_fill(lst):
        for f in lst:
            if callable(f):
                f()
            else:
                a.e(f)

    i = 0
    for t in range(8):
        for nt in range(2):
            a.e(smf(KACC + 4 * nt, vr(A + 4 * t, 4), wk(t, nt)))
            run_fill(fill[i])
            i += 1
    stamp(a, 2)
    SX = QACC
    fill = {i: [] for i in range(8)}
    fill[0] = [lambda: kxload(5)]
    fill[1] = [lambda: kxload(6)]
    fill[2] = [lambda: kxload(7), 'v_permlane32_swap_b32 v%d, v%d' % (KACC, KACC + 4), 'v_permlane32_swap_b32 v%d, v%d' % (KACC + 1, KACC + 5)]
    fill[3] = ['v_permlane32_swap_b32 v%d, v%d' % (KACC + 2, KACC + 6), 'v_permlane32_swap_b32 v%d, v%d' % (KACC + 3, KACC + 7),
               'v_add_f32 v%d, v%d, v%d' % (KACC, KACC, KACC + 4)]
    fill[4] = ['v_add_f32 v%d, v%d, v%d' % (KACC + 1, KACC + 1, KACC + 5), 'v_add_f32 v%d, v%d, v%d' % (KACC + 2, KACC + 2, KACC + 6),
               'v_add_f32 v%d, v%d, v%d' % (KACC + 3, KACC + 3, KACC + 7)]
    fill[5] = ['v_cvt_pk_bf16_f32 v%d, v%d, v%d' % (KACC, KACC, KACC + 1), 'v_cvt_pk_bf16_f32 v%d, v%d, v%d' % (KACC + 1, KACC + 2, KACC + 3),
               lambda: st.__setitem__('kw', k.lds('ds_write_b64 v%d, %s offset:%d' % (QW, vr(KACC, 2), L_KT)))]
    for f in range(8):
        kt, ks = f >> 2, f & 3
        k.wl(max(kxid[f], qid[ks]))
        a.e('v_mfma_f32_16x16x32_bf16 %s, %s, %s, %s' % (vr(SX + 4 * kt, 4), vr(kxregs[f % 5], 4), ar(QOP + 4 * ks, 4),
                                                        '0' if ks == 0 else vr(SX + 4 * kt, 4)))
        run_fill(fill[f])
    k.wl(st['kw'])
    a.e('s_barrier')
    stamp(a, 3)
    KOP = KACC
    kid = {}
    for ks in range(4):
        for jj in range(2):
            kid[ks] = k.lds('ds_read_b64_tr_b16 %s, v%d offset:%d' % (vr(KOP + 4 * ks + 2 * jj, 2), QTR, L_KT + 512 * ks + 128 * jj))
    a.e('s_mov_b32 m0, s81')
    a.e('s_add_u32 s9, s81, 1024')
    k.vm('buffer_load_dwordx4 v%d, s[52:55], s8 offen sc1 lds' % L16)
    a.e('s_mov_b32 m0, s9')
    a.e('s_add_u32 s8, s8, 1024')
    dma_id = k.vm('buffer_load_dwordx4 v%d, s[52:55], s8 offen sc1 lds' % L16)

    def vm(i):
        t, nt = i >> 1, i & 1
        k.wl(vid[i])
        a.e(smf(VACC + 4 * nt, vr(A + 4 * t, 4), vr(vbuf(i), 8)))
        vload(i + 3)

    xs = []
    xs += ['v_max3_f32 v%d, v%d, v%d, v%d' % (MX, SX, SX + 1, SX + 2),
           'v_max3_f32 v%d, v%d, v%d, v%d' % (T0, SX + 3, SX + 4, SX + 5),
           'v_max3_f32 v%d, v%d, v%d, v%d' % (MX, MX, SX + 6, SX + 7),
           'v_max_f32 v%d, v%d, v%d' % (MX, MX, T0)]
    for s_ in (32, 16):
        xs += ['v_mov_b32 v%d, v%d' % (T1, MX), 'v_permlane%d_swap_b32 v%d, v%d' % (s_, MX, T1), 'v_max_f32 v%d, v%d, v%d' % (MX, MX, T1)]
    xs += ['v_mul_f32 v%d, s83, v%d' % (NM, MX)]
    for j in range(8):
        xs += ['v_fma_f32 v%d, v%d, s82, v%d' % (SX + j, SX + j, NM)]
    for j in range(8):
        xs += ['v_exp_f32 v%d, v%d' % (SX + j, SX + j)]
    xs += ['v_add_f32 v%d, v%d, v%d' % (LX, SX, SX + 1), 'v_add_f32 v%d, v%d, v%d' % (T0, SX + 2, SX + 3)]
    xs += ['v_cvt_pk_bf16_f32 v%d, v%d, v%d' % (SX, SX, SX + 1), 'v_cvt_pk_bf16_f32 v%d, v%d, v%d' % (SX + 1, SX + 2, SX + 3)]
    xs += ['v_add_f32 v%d, v%d, v%d' % (LX, LX, SX + 4), 'v_add_f32 v%d, v%d, v%d' % (T0, T0, SX + 5),
           'v_add_f32 v%d, v%d, v%d' % (LX, LX, SX + 6), 'v_add_f32 v%d, v%d, v%d' % (T0, T0, SX + 7)]
    xs += ['v_cvt_pk_bf16_f32 v%d, v%d, v%d' % (SX + 2, SX + 4, SX + 5), 'v_cvt_pk_bf16_f32 v%d, v%d, v%d' % (SX + 3, SX + 6, SX + 7)]
    xs += ['v_add_f32 v%d, v%d, v%d' % (LX, LX, T0)]
    n_xs_pv = len(xs)
    for s_ in (32, 16):
        xs += ['v_mov_b32 v%d, v%d' % (T1, LX), 'v_permlane%d_swap_b32 v%d, v%d' % (s_, LX, T1), 'v_add_f32 v%d, v%d, v%d' % (LX, LX, T1)]
    pos = [0]

    def emit_xs(n):
        for _ in range(n):
            if pos[0] < len(xs):
                a.e(xs[pos[0]])
                pos[0] += 1

    for i in range(0, 4):
        vm(i)
        emit_xs(4)
    for ks in range(4):
        k.wl(kid[ks])
        a.e('v_mfma_f32_16x16x32_bf16 %s, %s, %s, %s' % (vr(SM, 4), vr(KOP + 4 * ks, 4), ar(QOP + 4 * ks, 4), '0' if ks == 0 else vr(SM, 4)))
        emit_xs(3)
    for i in range(4, 8):
        vm(i)
        emit_xs(4)
    emit_xs(max(0, n_xs_pv - pos[0]))
    k.wv(dma_id - 2)
    stamp(a, 4)
    for et in range(2):
        a.e('v_mfma_f32_16x16x32_bf16 %s, %s, %s, 0' % (vr(OX + 4 * et, 4), vr(VX + 4 * et, 4), vr(SX, 4)))
    a.e('v_add_u32 v%d, s84, v%d' % (RL, QTR))
    for jj in range(2):
        k.lds('ds_read_b64_tr_b16 %s, v%d offset:%d' % (ar(QOP + 2 * jj, 2), RL, L_KT + 128 * jj))
    emit_xs(100)
    ms = ['v_max3_f32 v%d, v%d, v%d, v%d' % (T0, SM, SM + 1, SM + 2),
          'v_max3_f32 v%d, v%d, v%d, v%d' % (T0, T0, SM + 3, MX),
          'v_mov_b32 v%d, v%d' % (T1, T0), 'v_permlane16_swap_b32 v%d, v%d' % (T0, T1), 'v_max_f32 v%d, v%d, v%d' % (T0, T0, T1),
          'v_mul_f32 v%d, s83, v%d' % (NM, T0),
          'v_fma_f32 v%d, v%d, s82, v%d' % (AL, MX, NM)]
    for j in range(4):
        ms += ['v_fma_f32 v%d, v%d, s82, v%d' % (SM + j, SM + j, NM)]
    ms += ['v_exp_f32 v%d, v%d' % (AL, AL)]
    for j in range(4):
        ms += ['v_exp_f32 v%d, v%d' % (SM + j, SM + j)]
    for j in range(8):
        ms += ['v_mul_f32 v%d, v%d, v%d' % (OX + j, OX + j, AL)]
    ms += ['v_add_f32 v%d, v%d, v%d' % (T0, SM, SM + 1), 'v_add_f32 v%d, v%d, v%d' % (T1, SM + 2, SM + 3),
           'v_cvt_pk_bf16_f32 v%d, v%d, v%d' % (SM, SM, SM + 1), 'v_cvt_pk_bf16_f32 v%d, v%d, v%d' % (SM + 1, SM + 2, SM + 3),
           'v_add_f32 v%d, v%d, v%d' % (T0, T0, T1),
           'v_mov_b32 v%d, v%d' % (T1, T0), 'v_permlane16_swap_b32 v%d, v%d' % (T0, T1), 'v_add_f32 v%d, v%d, v%d' % (T0, T0, T1),
           'v_fma_f32 v%d, v%d, v%d, v%d' % (T0, AL, LX, T0),
           'v_rcp_f32 v%d, v%d' % (RL, T0)]
    xs = ms
    pos[0] = 0
    for i in range(8, 16):
        vm(i)
        emit_xs(5)
    emit_xs(100)
    stamp(a, 5)
    a.e('v_cvt_pk_bf16_f32 v%d, v%d, v%d' % (VACC, VACC, VACC + 1))
    a.e('v_cvt_pk_bf16_f32 v%d, v%d, v%d' % (VACC + 1, VACC + 2, VACC + 3))
    a.e('v_cvt_pk_bf16_f32 v%d, v%d, v%d' % (VACC + 2, VACC + 4, VACC + 5))
    a.e('v_cvt_pk_bf16_f32 v%d, v%d, v%d' % (VACC + 3, VACC + 6, VACC + 7))
    a.e('s_cmp_eq_u32 s5, 63')
    a.e('s_cbranch_scc1 %s' % done)
    for et in range(2):
        a.e('v_mfma_f32_16x16x16_bf16 %s, %s, %s, %s' % (vr(OX + 4 * et, 4), vr(VACC + 2 * et, 2), vr(SM, 2), vr(OX + 4 * et, 4)))
    for j in range(0, 12, 2):
        a.e('v_mov_b64 %s, 0' % vr(A + j, 2))
    for j in range(8):
        a.e('v_mul_f32 v%d, v%d, v%d' % (OX + j, OX + j, RL))
    for et in range(2):
        a.e('v_cvt_pk_bf16_f32 v%d, v%d, v%d' % (OX + 4 * et, OX + 4 * et, OX + 4 * et + 1))
        a.e('v_cvt_pk_bf16_f32 v%d, v%d, v%d' % (OX + 4 * et + 1, OX + 4 * et + 2, OX + 4 * et + 3))
        ow = k.lds('ds_write_b64 v%d, %s offset:%d' % (OW, vr(OX + 4 * et, 2), 256 * et))
    for j in range(12, 24, 2):
        a.e('v_mov_b64 %s, 0' % vr(A + j, 2))
    k.wl(ow)
    a.e('s_barrier')
    stamp(a, 6)
    o0 = k.lds('ds_read_b128 %s, v%d offset:%d' % (vr(VX, 4), L16, L_OB))
    o1 = k.lds('ds_read_b128 %s, v%d offset:%d' % (vr(VX + 4, 4), L16, L_OB + 1024))
    for j in range(24, 32, 2):
        a.e('v_mov_b64 %s, 0' % vr(A + j, 2))
    a.e('''s_and_b32 s9, s5, 1
    s_lshl_b32 s9, s9, 18
    s_add_u32 s10, s9, s85
    s_add_u32 s11, s9, s86
    ''')
    for nt in range(2):
        k.lds('ds_read_b128 %s, v%d offset:%d' % (vr(STG + 8 * nt, 4), VB, 32768 + 2048 * nt))
        k.lds('ds_read_b128 %s, v%d offset:%d' % (vr(STG + 8 * nt + 4, 4), VB, 32768 + 2048 * nt + 1024))
    k.wl(o1)

    def post(pr):
        X, Y = A + 8 * pr, A + 8 * pr + 4
        l = []
        for r in range(4):
            l.append('v_permlane32_swap_b32 v%d, v%d' % (X + r, Y + r))
        for r in range(4):
            l.append('v_add_f32 v%d, v%d, v%d' % (X + r, X + r, Y + r))
        l.append('v_cvt_pk_bf16_f32 v%d, v%d, v%d' % (X, X, X + 1))
        l.append('v_cvt_pk_bf16_f32 v%d, v%d, v%d' % (X + 1, X + 2, X + 3))
        l.append('v_min_u32 v%d, s87, v%d' % (X, X))
        l.append('v_min_u32 v%d, s87, v%d' % (X + 1, X + 1))
        l.append('buffer_store_dwordx2 %s, v%d, s[52:55], s10 offen%s' % (vr(X, 2), PST, sc))
        l.append('s_add_u32 s10, s10, 65536')
        return l

    hooks['pre_part'](a)
    xs = []
    pos[0] = 0
    for pr in range(4):
        for u in range(4):
            t2, tt = u >> 1, 2 * pr + (u & 1)
            a.e(smf(A + 4 * tt, vr(VX + 4 * t2, 4), vr(wo_base(tt, t2), 8)))
            if u >= 1:
                emit_xs(5)
        xs = xs[pos[0]:] + post(pr)
        pos[0] = 0
    emit_xs(100)
    stamp(a, 7)
    for j in range(0, 8, 2):
        a.e('v_mov_b64 %s, 0' % vr(KACC + j, 2))
    a.e('''s_mov_b32 s13, s88
    s_add_u32 s88, s88, 8192
    s_cmp_eq_u32 s88, 24576
    s_cselect_b32 s88, 0, s88
    ''')
    nored = a.newlabel('R_nored')
    a.e('s_cmp_lg_u32 s4, 0')
    a.e('s_cbranch_scc1 %s' % nored)
    SEL = SM
    a.e('v_mov_b32 v%d, v%d' % (SEL, SELE))
    a.e('v_mov_b32 v%d, v%d' % (SEL + 1, SELO))
    a.e('v_mov_b32 v%d, v%d' % (SEL + 2, SELE))
    a.e('v_mov_b32 v%d, v%d' % (SEL + 3, SELO))
    a.e('s_add_u32 s12, s11, 4096')
    p1 = a.newlabel('R_poll1')
    a.e('%s:' % p1)
    for i in range(8):
        a.e('buffer_load_dwordx4 %s, v%d, s[52:55], s%d offen offset:%d sc1' % (vr(A + 4 * i, 4), L16, 11 if i < 4 else 12, 1024 * (i & 3)))
    spin_guard(a, abort)
    a.e('v_mov_b64 %s, 0' % vr(QACC, 2))
    a.e('v_mov_b64 %s, 0' % vr(QACC + 2, 2))
    for i in range(4):
        b = A + 8 * i
        a.e('s_waitcnt vmcnt(%d)' % (6 - 2 * i))
        a.e('v_smfmac_f32_16x16x64_bf16 %s, %s, %s, v%d' % (vr(QACC, 4), vr(SEL, 4), vr(b, 8), SELI))
        if i == 0:
            a.e('v_max3_u32 v%d, v%d, v%d, v%d' % (T0, b, b + 1, b + 2))
            a.e('v_max3_u32 v%d, v%d, v%d, v%d' % (T0, T0, b + 3, b + 4))
            a.e('v_max3_u32 v%d, v%d, v%d, v%d' % (T0, T0, b + 5, b + 6))
            a.e('v_max_u32 v%d, v%d, v%d' % (T0, T0, b + 7))
        else:
            for q in range(4):
                a.e('v_max3_u32 v%d, v%d, v%d, v%d' % (T0, T0, b + 2 * q, b + 2 * q + 1))
    a.e('v_cmp_eq_u32 vcc, -1, v%d' % T0)
    a.e('s_cbranch_vccnz %s' % p1)
    stamp(a, 8)
    a.e('s_add_u32 s9, s88, s89')
    a.e('v_cvt_pk_bf16_f32 v%d, v%d, v%d' % (QACC, QACC, QACC + 1))
    a.e('v_cvt_pk_bf16_f32 v%d, v%d, v%d' % (QACC + 1, QACC + 2, QACC + 3))
    a.e('v_min_u32 v%d, s87, v%d' % (QACC, QACC))
    a.e('v_min_u32 v%d, s87, v%d' % (QACC + 1, QACC + 1))
    a.e('buffer_store_dwordx2 %s, v%d, s[52:55], s9 offen%s' % (vr(QACC, 2), MST, sc))
    for j in range(4):
        a.e('v_mov_b32 v%d, -1' % (QACC + 4 + j))
    a.e('s_add_u32 s9, s13, s89')
    a.e('buffer_store_dwordx2 %s, v%d, s[52:55], s9 offen%s' % (vr(QACC + 4, 2), MST, sc))
    for i in range(8):
        a.e('buffer_store_dwordx4 %s, v%d, s[52:55], s%d offen offset:%d%s' % (vr(QACC + 4, 4), L16, 11 if i < 4 else 12, 1024 * (i & 3), sc))
    a.e('%s:' % nored)
    a.e('s_barrier')
    stamp(a, 9)
    for j in range(0, 8, 2):
        a.e('v_mov_b64 %s, 0' % vr(QACC + j, 2))
    a.e('s_add_u32 s9, s88, s78')
    p2 = a.newlabel('R_poll2')
    PB = STG + 16
    a.e('%s:' % p2)
    a.e('buffer_load_dwordx4 %s, v%d, s[52:55], s9 offen sc1' % (vr(PB, 4), L16))
    a.e('buffer_load_dwordx4 %s, v%d, s[52:55], s9 offen offset:1024 sc1' % (vr(PB + 4, 4), L16))
    spin_guard(a, abort)
    a.e('s_waitcnt vmcnt(0)')
    a.e('v_max3_u32 v%d, v%d, v%d, v%d' % (T0, PB, PB + 1, PB + 2))
    a.e('v_max3_u32 v%d, v%d, v%d, v%d' % (T0, T0, PB + 3, PB + 4))
    a.e('v_max3_u32 v%d, v%d, v%d, v%d' % (T0, T0, PB + 5, PB + 6))
    a.e('v_max_u32 v%d, v%d, v%d' % (T0, T0, PB + 7))
    a.e('v_cmp_eq_u32 vcc, -1, v%d' % T0)
    a.e('s_cbranch_vccnz %s' % p2)
    stamp(a, 10)
    a.e('ds_write_b128 v%d, %s' % (MW, vr(PB, 4)))
    a.e('ds_write_b128 v%d, %s offset:1024' % (MW, vr(PB + 4, 4)))
    a.e('s_mov_b32 s75, s79')
    stamp_flush(a)
    a.e('s_add_u32 s5, s5, 1')
    a.e('s_waitcnt lgkmcnt(0)')
    a.e('s_barrier')
    a.e('s_branch %s' % top)


def publish_kv(a, k, step_sgpr):
    a.e('s_lshl_b32 s9, s%d, 17' % step_sgpr)
    a.e('s_add_u32 s9, s9, s77')
    k.vm('buffer_store_dwordx4 %s, v%d, s[52:55], s9 offen sc1' % (ar(QOP, 4), L16))
    a.e('s_add_u32 s9, s9, %d' % (WS_VM - WS_KM))
    k.vm('buffer_store_dwordx4 %s, v%d, s[52:55], s9 offen sc1' % (vr(VACC, 4), L16))


def role_r(a, abort, hooks=None):
    r_setup(a)
    r_init_exchange(a)
    r_load_weights(a)
    r_load_mem0(a)
    a.e('''s_mov_b32 s79, 0
    s_lshl_b32 s6, s3, 13
    s_lshl_b32 s7, s4, 11
    s_add_u32 s80, s6, s7            ; h*8192 + w*2048
    s_add_u32 s81, s7, {L_KX}        ; kx DMA lds dest
    s_mov_b32 s82, {c}
    s_mov_b32 s83, {nc}
    s_lshl_b32 s84, s4, 9            ; w*512 (km hold read)
    s_lshl_b32 s8, s3, 8
    s_add_u32 s85, s8, {WS_PART}
    s_add_u32 s86, s6, {WS_PART}
    s_mov_b32 s87, 0xfffffffe
    s_mov_b32 s88, 0                 ; slot offset of mem_s
    s_add_u32 s89, s8, {WS_MEM}
    s_add_u32 s78, s7, {WS_MEM}
    s_lshl_b32 s8, s3, 12
    s_lshl_b32 s9, s4, 10
    s_add_u32 s77, s8, s9
    s_add_u32 s77, s77, {WS_KM}
    s_mov_b32 s5, 0
    '''.format(L_KX=L_KX, c=f32(CEXP), nc=f32(-CEXP), WS_PART=WS_PART, WS_MEM=WS_MEM, WS_KM=WS_KM))
    if hooks and 'start' in hooks:
        hooks['start'](a)
    a.e('''s_add_u32 s8, s80, %d
    s_mov_b32 m0, s81
    s_add_u32 s9, s81, 1024
    buffer_load_dwordx4 v%d, s[52:55], s8 offen sc1 lds
    s_mov_b32 m0, s9
    s_add_u32 s8, s8, 1024
    buffer_load_dwordx4 v%d, s[52:55], s8 offen sc1 lds''' % (WS_K, L16, L16))
    for nt in range(2):
        a.e('ds_read_b128 %s, v%d offset:%d' % (vr(STG + 8 * nt, 4), VB, 32768 + 2048 * nt))
        a.e('ds_read_b128 %s, v%d offset:%d' % (vr(STG + 8 * nt + 4, 4), VB, 32768 + 2048 * nt + 1024))
    for j in range(0, 16, 2):
        a.e('v_mov_b64 %s, 0' % vr(QACC + j, 2))
    for j in range(0, 8, 2):
        a.e('v_mov_b64 %s, 0' % vr(VACC + j, 2))
    pl = a.newlabel('R_pollinit')
    a.e('v_mov_b32 v%d, 0' % T0)
    a.e('%s:' % pl)
    a.e('buffer_load_dword v%d, v%d, s[60:63], 0 offen offset:%d sc1' % (T1, T0, DBG_RINIT))
    a.e('buffer_load_dword v%d, v%d, s[60:63], 0 offen offset:%d sc1' % (AL, T0, DBG_XT))
    spin_guard(a, abort)
    a.e('s_waitcnt vmcnt(0)')
    a.e('v_readfirstlane_b32 s6, v%d' % T1)
    a.e('v_readfirstlane_b32 s7, v%d' % AL)
    a.e('s_cmp_lt_u32 s6, 32')
    a.e('s_cbranch_scc1 %s' % pl)
    a.e('s_waitcnt lgkmcnt(0)')
    a.e('s_barrier')
    done = a.newlabel('R_done')
    slow = a.newlabel('R_slow')

    def top_hook(a_, k):
        lab = a_.newlabel('R_nopub')
        a_.e('s_cmp_eq_u32 s5, 0')
        a_.e('s_cbranch_scc1 %s' % lab)
        a_.e('s_sub_u32 s10, s5, 1')
        publish_kv(a_, k, 10)
        a_.e('%s:' % lab)
        for j in range(0, 8, 2):
            a_.e('v_mov_b64 %s, 0' % vr(VACC + j, 2))
        if hooks and 'top' in hooks:
            hooks['top'](a_, k)

    hk = {'top': top_hook, 'pre_part': lambda a_: None}
    a.e('s_cmp_lt_u32 s7, 32')
    a.e('s_cbranch_scc1 %s' % slow)
    a.e('s_cmp_eq_u32 s76, 0')
    a.e('s_cbranch_scc1 %s' % slow)
    r_loop(a, True, abort, done, hk)
    a.e('%s:' % slow)
    r_loop(a, False, abort, done, hk)
    a.e('%s:' % done)
    k = Trk(a)
    a.e('s_waitcnt lgkmcnt(0)')
    publish_kv(a, k, 5)
    a.e('s_waitcnt vmcnt(0)')
    a.e('s_barrier')
    if hooks and 'end' in hooks:
        hooks['end'](a)
```

```python
from common import *

LOG2E = 1.4426950408889634


def role_mod(a):
    srd(a, 56, P_WMOD)
    srd(a, 60, P_C)
    a.e('''s_mul_i32 s4, s3, 2731
    s_lshr_b32 s4, s4, 16            ; kq
    s_mul_i32 s5, s4, 24
    s_sub_u32 s5, s3, s5             ; cb
    v_lshrrev_b32 v1, 4, v0          ; r
    v_and_b32 v2, 15, v0             ; c
    s_lshl_b32 s6, s4, 6             ; kq*64
    v_add_u32 v3, s6, v1             ; row0
    s_movk_i32 s7, 6144
    v_mul_lo_u32 v4, v3, s7
    s_lshl_b32 s8, s5, 8             ; cb*256
    v_lshl_add_u32 v4, v2, 4, v4
    v_add_u32 v4, s8, v4
    v_lshlrev_b32 v5, 1, v3          ; c offset
    ''')
    for i in range(4):
        a.e('s_mov_b32 s9, %d' % (98304 * i))
        a.e('buffer_load_dwordx4 %s, v4, s[56:59], s9 offen' % vr(8 + 4 * i, 4))
        a.e('buffer_load_ushort v%d, v5, s[60:63], 0 offen offset:%d' % (24 + i, 32 * i))
    a.e('s_waitcnt vmcnt(0)')
    a.e('s_mov_b32 s9, %s' % f32(-LOG2E))
    for i in range(4):
        c = 24 + i
        a.e('v_lshlrev_b32 v%d, 16, v%d' % (c, c))
        a.e('v_mul_f32 v28, s9, v%d' % c)
        a.e('v_exp_f32 v28, v28')
        a.e('v_add_f32 v28, 1.0, v28')
        a.e('v_rcp_f32 v28, v28')
        a.e('v_mul_f32 v%d, v%d, v28' % (c, c))
        a.e('v_cvt_pk_bf16_f32 v%d, v%d, v%d' % (c, c, c))
        a.e('v_lshlrev_b32 v%d, 16, v%d' % (c, c))
    for i in range(4):
        for q in range(4):
            w = 8 + 4 * i + q
            a.e('v_lshlrev_b32 v28, 16, v%d' % w)
            a.e('v_and_b32 v29, 0xffff0000, v%d' % w)
            if i == 0:
                a.e('v_mul_f32 v%d, v28, v24' % (32 + 2 * q))
                a.e('v_mul_f32 v%d, v29, v24' % (33 + 2 * q))
            else:
                a.e('v_fmac_f32 v%d, v28, v%d' % (32 + 2 * q, 24 + i))
                a.e('v_fmac_f32 v%d, v29, v%d' % (33 + 2 * q, 24 + i))
    a.e('''v_lshlrev_b32 v6, 9, v1
    v_lshl_add_u32 v6, v2, 5, v6      ; r*512 + c*32
    ds_write_b128 v6, v[32:35]
    ds_write_b128 v6, v[36:39] offset:16
    s_waitcnt lgkmcnt(0)
    s_barrier
    v_and_b32 v7, 127, v0
    v_lshlrev_b32 v7, 2, v7
    ''')
    for r in range(16):
        a.e('ds_read_b32 v%d, v7 offset:%d' % (8 + r, 512 * r))
    a.e('s_waitcnt lgkmcnt(0)')
    for r in range(1, 16):
        a.e('v_add_f32 v8, v8, v%d' % (8 + r))
    a.e('''s_mul_i32 s9, s4, 12288
    s_lshl_b32 s10, s5, 9
    s_add_u32 s9, s9, s10
    s_add_u32 s9, s9, %d
    buffer_store_dword v8, v7, s[52:55], s9 offen sc1
    s_waitcnt vmcnt(0)
    s_barrier''' % WS_MODP)


def sum_modp(a, voff, dst, tmp, col_off_bytes):
    for kq in range(8):
        a.e('s_mov_b32 s9, %d' % (WS_MODP + kq * 12288 + col_off_bytes))
        a.e('buffer_load_dwordx4 %s, v%d, s[52:55], s9 offen sc1' % (vr(tmp + 4 * kq, 4), voff))
    a.e('s_waitcnt vmcnt(0)')
    for j in range(4):
        a.e('v_add_f32 v%d, v%d, v%d' % (dst + j, tmp + j, tmp + 4 + j))
        for kq in range(2, 8):
            a.e('v_add_f32 v%d, v%d, v%d' % (dst + j, dst + j, tmp + 4 * kq + j))
    for j in range(4):
        a.e('v_cvt_pk_bf16_f32 v%d, v%d, v%d' % (dst + j, dst + j, dst + j))
        a.e('v_lshlrev_b32 v%d, 16, v%d' % (dst + j, dst + j))


def add1_round(a, r, n):
    for j in range(n):
        a.e('v_add_f32 v%d, 1.0, v%d' % (r + j, r + j))
        a.e('v_cvt_pk_bf16_f32 v%d, v%d, v%d' % (r + j, r + j, r + j))
        a.e('v_lshlrev_b32 v%d, 16, v%d' % (r + j, r + j))


def role_l1(a, wait_mod=None):
    srd(a, 56, P_X)
    wave_id(a, 4, 1)
    a.e('''v_and_b32 v1, 63, v0         ; lane
    v_and_b32 v2, 31, v1             ; n token
    v_lshrrev_b32 v3, 5, v1          ; g2
    v_lshlrev_b32 v4, 10, v2
    v_lshl_add_u32 v4, v3, 4, v4     ; n*1024 + g2*16
    s_lshl_b32 s5, s3, 15            ; seg*32*1024
    s_lshl_b32 s6, s4, 8             ; w*8*32B
    s_add_u32 s5, s5, s6
    ''')
    for i in range(8):
        a.e('buffer_load_dwordx4 %s, v4, s[56:59], s5 offen offset:%d' % (vr(64 + 4 * i, 4), 32 * i))
    if wait_mod:
        wait_mod(a)
    a.e('v_lshlrev_b32 v5, 4, v0')
    sum_modp(a, 5, 8, 16, 0)
    lab = a.newlabel('L1_noadd')
    a.e('s_cmp_lt_u32 s4, 2')
    a.e('s_cbranch_scc1 %s' % lab)
    add1_round(a, 8, 4)
    a.e('%s:' % lab)
    a.e('ds_write_b128 v5, v[8:11]')
    lab2 = a.newlabel('L1_nomodf')
    a.e('s_cmp_lg_u32 s3, 0')
    a.e('s_cbranch_scc1 %s' % lab2)
    a.e('s_mov_b32 s10, %d' % WS_MODF)
    a.e('buffer_store_dwordx4 v[8:11], v5, s[52:55], s10 offen sc1')
    sum_modp(a, 5, 12, 16, 4096)
    a.e('s_mov_b32 s10, %d' % (WS_MODF + 4096))
    a.e('buffer_store_dwordx4 v[12:15], v5, s[52:55], s10 offen sc1')
    sum_modp(a, 5, 48, 16, 8192)
    lab3 = a.newlabel('L1_noadd2')
    a.e('s_cmp_ge_u32 s4, 2')
    a.e('s_cbranch_scc1 %s' % lab3)
    add1_round(a, 48, 4)
    a.e('%s:' % lab3)
    a.e('s_mov_b32 s10, %d' % (WS_MODF + 8192))
    a.e('buffer_store_dwordx4 v[48:51], v5, s[52:55], s10 offen sc1')
    a.e('%s:' % lab2)
    a.e('s_waitcnt vmcnt(0)')
    for i in range(8):
        for q in range(4):
            w = 64 + 4 * i + q
            a.e('v_lshlrev_b32 v%d, 16, v%d' % (128 + 8 * i + 2 * q, w))
            a.e('v_and_b32 v%d, 0xffff0000, v%d' % (129 + 8 * i + 2 * q, w))
    a.e('v_add_f32 v6, v128, v129')
    a.e('v_mul_f32 v7, v128, v128')
    a.e('v_fmac_f32 v7, v129, v129')
    for k in range(2, 64):
        a.e('v_add_f32 v6, v6, v%d' % (128 + k))
        a.e('v_fmac_f32 v7, v%d, v%d' % (128 + k, 128 + k))
    xl_reduce(a, 'v_add_f32', 6, 12, [32])
    xl_reduce(a, 'v_add_f32', 7, 12, [32])
    a.e('''s_lshl_b32 s6, s4, 8
    v_lshlrev_b32 v12, 3, v2
    v_add_u32 v13, s6, v12
    ds_write_b64 v13, v[6:7] offset:4096
    s_waitcnt lgkmcnt(0)
    s_barrier
    ds_read_b64 v[16:17], v12 offset:4096
    ds_read_b64 v[18:19], v12 offset:4352
    ds_read_b64 v[20:21], v12 offset:4608
    ds_read_b64 v[22:23], v12 offset:4864
    s_waitcnt lgkmcnt(0)
    v_add_f32 v16, v16, v18
    v_add_f32 v17, v17, v19
    v_add_f32 v20, v20, v22
    v_add_f32 v21, v21, v23
    v_add_f32 v16, v16, v20
    v_add_f32 v17, v17, v21
    s_mov_b32 s7, %s
    v_mul_f32 v16, s7, v16           ; mean
    v_mul_f32 v17, s7, v17           ; E[x^2]
    v_fma_f32 v17, -v16, v16, v17    ; var
    v_max_f32 v17, 0, v17
    v_add_f32 v17, %s, v17
    v_rsq_f32 v17, v17               ; rstd
    v_mul_f32 v18, v16, v17          ; mean*rstd
    s_lshl_b32 s6, s4, 9             ; w*8*16*4 bytes
    v_lshlrev_b32 v12, 5, v3         ; g2*32 bytes
    v_add_u32 v12, s6, v12
    v_lshlrev_b32 v13, 4, v1         ; lane*16
    s_lshl_b32 s5, s3, 15
    s_lshl_b32 s6, s4, 13
    s_add_u32 s5, s5, s6
    s_add_u32 s5, s5, %d
    ''' % (f32(1.0 / 512), f32(1e-5), WS_H))
    for i in range(8):
        a.e('ds_read_b128 v[24:27], v12 offset:%d' % (64 * i))
        a.e('ds_read_b128 v[28:31], v12 offset:%d' % (64 * i + 16))
        a.e('ds_read_b128 v[32:35], v12 offset:%d' % (2048 + 64 * i))
        a.e('ds_read_b128 v[36:39], v12 offset:%d' % (2048 + 64 * i + 16))
        for j in range(8):
            x = 128 + 8 * i + j
            a.e('v_fma_f32 v%d, v%d, v17, -v18' % (x, x))
        a.e('s_waitcnt lgkmcnt(0)')
        for j in range(8):
            x = 128 + 8 * i + j
            a.e('v_fma_f32 v%d, v%d, v%d, v%d' % (x, x, 32 + j, 24 + j))
        for q in range(4):
            a.e('v_cvt_pk_bf16_f32 v%d, v%d, v%d' % (64 + 4 * i + q, 128 + 8 * i + 2 * q, 129 + 8 * i + 2 * q))
        if i < 4:
            a.e('buffer_store_dwordx4 %s, v13, s[52:55], s5 offen offset:%d sc1' % (vr(64 + 4 * i, 4), 1024 * i))
        else:
            if i == 4:
                a.e('s_add_u32 s5, s5, 4096')
            a.e('buffer_store_dwordx4 %s, v13, s[52:55], s5 offen offset:%d sc1' % (vr(64 + 4 * i, 4), 1024 * (i - 4)))
    a.e('s_waitcnt vmcnt(0)')
    a.e('s_barrier')


def role_p(a, wait_h=None, signal=None):
    wave_id(a, 4, 1)
    a.e('''s_lshr_b32 s5, s3, 5          ; mat
    s_and_b32 s6, s3, 31             ; h
    s_cmp_eq_u32 s5, 0
    s_cselect_b32 s56, s%d, s%d
    s_cselect_b32 s57, s%d, s%d
    s_cmp_eq_u32 s5, 2
    s_cselect_b32 s56, s%d, s56
    s_cselect_b32 s57, s%d, s57
    s_and_b32 s57, s57, 0xffff
    s_mov_b32 s58, 0x%x
    s_mov_b32 s59, 0x00020000
    v_and_b32 v1, 63, v0             ; lane
    v_lshrrev_b32 v2, 4, v1          ; G
    v_and_b32 v3, 15, v1             ; i16
    v_lshlrev_b32 v4, 13, v2
    v_lshl_add_u32 v4, v3, 4, v4     ; G*8192 + i16*16
    s_lshl_b32 s7, s6, 8             ; h*256
    s_lshl_b32 s8, s4, 20            ; w*128*8192
    s_add_u32 s7, s7, s8
    s_lshl_b32 s8, s4, 15            ; lds base w*32768
    ''' % (pbase(P_WK), pbase(P_WV), pbase(P_WK) + 1, pbase(P_WV) + 1, pbase(P_WQ), pbase(P_WQ) + 1, SIZES[P_WQ]))
    for i in range(32):
        a.e('s_mov_b32 m0, s8')
        a.e('s_add_u32 s8, s8, 1024')
        a.e('buffer_load_dwordx4 v4, s[56:59], s7 offen lds')
        a.e('s_add_u32 s7, s7, 32768')
    a.e('''v_lshrrev_b32 v5, 1, v2
    v_lshlrev_b32 v5, 3, v5
    v_lshrrev_b32 v6, 2, v3          ; r
    v_add_u32 v5, v5, v6
    v_lshlrev_b32 v5, 8, v5
    v_and_b32 v6, 1, v2
    v_lshl_add_u32 v5, v6, 5, v5
    v_and_b32 v6, 3, v3
    v_lshl_add_u32 v5, v6, 3, v5
    s_lshl_b32 s8, s4, 6
    v_add_u32 v5, s8, v5
    v_add_u32 v6, 0x10000, v5
    v_lshlrev_b32 v7, 4, v1          ; lane*16
    s_waitcnt vmcnt(0)
    s_barrier''')
    for ks in range(32):
        for rd in range(2):
            off = ks * 4096 + rd * 1024
            a.e('ds_read_b64_tr_b16 %s, v%d offset:%d' % (ar(4 * ks + 2 * rd, 2), 5 if off < 65536 else 6, off & 0xffff))
    a.e('s_waitcnt lgkmcnt(0)')
    a.e('s_barrier')
    if wait_h:
        wait_h(a)
    a.e('''v_and_b32 v8, 1, v2              ; n>>4
    v_lshrrev_b32 v9, 1, v2          ; g2
    v_lshlrev_b32 v10, 8, v9
    v_lshl_add_u32 v10, v3, 4, v10
    s_lshl_b32 s8, s4, 10
    v_lshl_add_u32 v11, v8, 12, v10
    v_add_u32 v11, s8, v11           ; K/Q voffset
    s_lshl_b32 s8, s4, 11
    v_lshl_add_u32 v12, v8, 10, v10
    v_add_u32 v12, s8, v12           ; V voffset
    s_lshl_b32 s9, s5, 24
    s_add_u32 s9, s9, %d             ; out base (K,V,Q consecutive 16MB)
    s_lshl_b32 s8, s6, 13
    s_add_u32 s9, s9, s8             ; + h*8192
    s_lshl_b32 s10, s4, 13           ; w*8192: this wave's part of a 32KB slot
    s_sub_u32 s11, s91, 1            ; last seg
    ''' % WS_K)

    def issue_dma(seg_sgpr, slot_sgpr):
        a.e('s_min_u32 s12, s%d, s11' % seg_sgpr)
        a.e('s_lshl_b32 s12, s12, 15')
        a.e('s_add_u32 s12, s12, s10')
        a.e('s_add_u32 s12, s12, %d' % WS_H)
        a.e('s_lshl_b32 s13, s%d, 15' % slot_sgpr)
        a.e('s_add_u32 s13, s13, s10')
        for i in range(8):
            a.e('s_mov_b32 m0, s13')
            a.e('s_add_u32 s13, s13, 1024')
            a.e('buffer_load_dwordx4 v7, s[52:55], s12 offen sc1 lds')
            a.e('s_add_u32 s12, s12, 1024')

    a.e('s_mov_b32 s14, s90')
    a.e('s_mov_b32 s15, 0')
    for i in range(3):
        issue_dma(14, 15)
        a.e('s_add_u32 s14, s14, 1')
        a.e('s_add_u32 s15, s15, 1')
    a.e('s_mov_b32 s60, s90')
    a.e('s_mov_b32 s61, 0')
    lv = a.newlabel('P_V')
    lend = a.newlabel('P_end')
    a.e('s_cmp_eq_u32 s5, 1')
    a.e('s_cbranch_scc1 %s' % lv)
    for isv in (0, 1):
        top = a.newlabel('P_loop')
        if isv:
            a.e('%s:' % lv)
        a.e('%s:' % top)
        a.e('s_waitcnt vmcnt(10)')
        a.e('s_barrier')
        if signal:
            signal(a)
        issue_dma(14, 15)
        a.e('s_add_u32 s14, s14, 1')
        a.e('s_add_u32 s15, s15, 1')
        a.e('s_and_b32 s15, s15, 3')
        a.e('s_lshl_b32 s12, s61, 15')
        a.e('v_add_u32 v13, s12, v7')
        NB = 8
        for ks in range(NB):
            a.e('ds_read_b128 %s, v13 offset:%d' % (vr(32 + 4 * ks, 4), 1024 * ks))
        for ks in range(32):
            a.e('s_waitcnt lgkmcnt(%d)' % min(NB - 1, 31 - ks))
            h = vr(32 + 4 * (ks % NB), 4)
            w = ar(4 * ks, 4)
            c = '0' if ks == 0 else 'v[16:31]'
            if isv:
                a.e('v_mfma_f32_32x32x16_bf16 v[16:31], %s, %s, %s' % (h, w, c))
            else:
                a.e('v_mfma_f32_32x32x16_bf16 v[16:31], %s, %s, %s' % (w, h, c))
            if ks + NB < 32:
                a.e('ds_read_b128 %s, v13 offset:%d' % (h, 1024 * (ks + NB)))
        a.e('s_lshl_b32 s12, s60, 18')
        a.e('s_add_u32 s12, s12, s9')
        for cq in range(2):
            if isv:
                grp = [cq, cq + 2]
            else:
                grp = [2 * cq, 2 * cq + 1]
            for gi, aa in enumerate(grp):
                a.e('v_cvt_pk_bf16_f32 v%d, v%d, v%d' % (64 + 4 * cq + 2 * gi, 16 + 4 * aa, 17 + 4 * aa))
                a.e('v_cvt_pk_bf16_f32 v%d, v%d, v%d' % (65 + 4 * cq + 2 * gi, 18 + 4 * aa, 19 + 4 * aa))
            a.e('buffer_store_dwordx4 %s, v%d, s[52:55], s12 offen offset:%d sc1' % (vr(64 + 4 * cq, 4), 12 if isv else 11, 512 * cq))
        a.e('s_add_u32 s60, s60, 1')
        a.e('s_add_u32 s61, s61, 1')
        a.e('s_and_b32 s61, s61, 3')
        a.e('s_cmp_lt_u32 s60, s91')
        a.e('s_cbranch_scc1 %s' % top)
        if not isv:
            a.e('s_branch %s' % lend)
    a.e('%s:' % lend)
    a.e('s_waitcnt vmcnt(0)')
    a.e('s_barrier')
```

```python
from common import *

CEXP = 128 ** -0.5 * 1.4426950408889634
LOG2E = 1.4426950408889634


def lane_setup(a):
    a.e('''v_and_b32 v1, 63, v0
    v_and_b32 v2, 15, v1
    v_lshrrev_b32 v3, 4, v1
    v_lshrrev_b32 v4, 2, v2
    v_and_b32 v5, 3, v2
    v_lshrrev_b32 v6, 1, v3
    v_and_b32 v7, 1, v3
    v_lshlrev_b32 v8, 4, v1''')


def a_prologue(a):
    wave_id(a, 4, 1)
    lane_setup(a)
    srd(a, 56, P_WO)
    a.e('''s_lshl_b32 s6, s3, 17
    s_lshl_b32 s7, s4, 15
    s_add_u32 s6, s6, s7''')
    for i in range(32):
        a.e('s_mov_b32 m0, s7')
        a.e('s_add_u32 s7, s7, 1024')
        a.e('buffer_load_dwordx4 v8, s[56:59], s6 offen lds')
        a.e('s_add_u32 s6, s6, 1024')
    a.e('''v_lshl_add_u32 v9, v6, 3, v4
    v_lshlrev_b32 v9, 10, v9
    v_lshl_add_u32 v9, v7, 5, v9
    v_lshl_add_u32 v9, v5, 3, v9
    s_lshl_b32 s6, s4, 8
    v_add_u32 v9, s6, v9
    v_add_u32 v10, 0x10000, v9
    s_waitcnt vmcnt(0)
    s_barrier''')
    for mt in range(4):
        for ks in range(8):
            for rd in range(2):
                off = (16 * ks + 4 * rd) * 1024 + mt * 64
                a.e('ds_read_b64_tr_b16 %s, v%d offset:%d' % (ar((mt * 8 + ks) * 4 + 2 * rd, 2), 9 if off < 65536 else 10, off & 0xffff))
    a.e('''s_and_b32 s5, s4, 1              ; qt
    s_lshr_b32 s92, s4, 1             ; eh
    s_lshl_b32 s6, s5, 4
    v_add_u32 v11, s6, v2
    v_lshlrev_b32 v12, 2, v3         ; 4G''')
    for kt in range(2):
        for r in range(4):
            a.e('v_add_u32 v13, %d, v12' % (16 * kt + r))
            a.e('v_cmp_le_u32 %s, v13, v11' % sr(64 + 2 * (4 * kt + r), 2))
    a.e('''v_cmp_gt_u32 vcc, 2, v3
    v_cndmask_b32 v14, 0, 1.0, vcc    ; 1 for G<2 (count mem keys once)
    ; OF write addr: (32(G>>1) + 16qt + n)*16 + 8(G&1) + eh*4096
    v_lshl_add_u32 v9, v6, 5, v11
    v_lshlrev_b32 v9, 4, v9
    v_lshl_add_u32 v9, v7, 3, v9
    s_lshl_b32 s6, s92, 12
    v_add_u32 v9, s6, v9
    ; OP store voffset: token*32768 + w*256 + g2*16   (token = l&31)
    v_and_b32 v10, 31, v1
    v_lshlrev_b32 v10, 15, v10
    v_lshl_add_u32 v10, v6, 4, v10
    s_lshl_b32 s6, s4, 8
    v_add_u32 v10, s6, v10
    s_mov_b32 s82, %s
    s_mov_b32 s83, %s
    v_mov_b32 v15, 0xff800000         ; -inf
    s_waitcnt lgkmcnt(0)
    s_barrier''' % (f32(CEXP), f32(-CEXP)))


def a_segment(a, seg):
    QF, KX, KM, VT, VM = 16, 32, 64, 80, 96
    SM, SX = 104, 108
    O = 116
    MX, NM, L, T0, T1 = 132, 133, 134, 135, 136
    OF = 16
    ACC = 140
    a.e('''s_lshl_b32 s6, s%d, 5
    s_add_u32 s6, s6, s3             ; s*32+h
    s_lshl_b32 s7, s6, 13
    s_lshl_b32 s8, s5, 12
    s_add_u32 s8, s8, s7
    s_add_u32 s8, s8, %d             ; Q frags of tile qt
    s_add_u32 s9, s7, %d             ; K
    s_add_u32 s10, s9, 4096
    s_lshl_b32 s11, s92, 12
    s_add_u32 s11, s11, s7
    s_add_u32 s11, s11, %d           ; VT e-half
    s_lshl_b32 s7, s6, 12
    s_add_u32 s12, s7, %d            ; KM
    s_lshl_b32 s13, s92, 11
    s_add_u32 s13, s13, s7
    s_add_u32 s13, s13, %d           ; VM
    ''' % (seg, WS_Q, WS_K, WS_V, WS_KM, WS_VM))
    for i in range(4):
        a.e('buffer_load_dwordx4 %s, v8, s[52:55], s8 offen offset:%d sc1' % (vr(QF + 4 * i, 4), 1024 * i))
    for i in range(4):
        a.e('buffer_load_dwordx4 %s, v8, s[52:55], s9 offen offset:%d sc1' % (vr(KX + 4 * i, 4), 1024 * i))
    for i in range(4):
        a.e('buffer_load_dwordx4 %s, v8, s[52:55], s10 offen offset:%d sc1' % (vr(KX + 16 + 4 * i, 4), 1024 * i))
    for i in range(4):
        a.e('buffer_load_dwordx4 %s, v8, s[52:55], s12 offen offset:%d sc1' % (vr(KM + 4 * i, 4), 1024 * i))
    for i in range(4):
        a.e('buffer_load_dwordx4 %s, v8, s[52:55], s11 offen offset:%d sc1' % (vr(VT + 4 * i, 4), 1024 * i))
    for i in range(2):
        a.e('buffer_load_dwordx4 %s, v8, s[52:55], s13 offen offset:%d sc1' % (vr(VM + 4 * i, 4), 1024 * i))
    a.e('s_waitcnt vmcnt(6)')
    for kt in range(2):
        for ks in range(4):
            a.e('v_mfma_f32_16x16x32_bf16 %s, %s, %s, %s' % (vr(SX + 4 * kt, 4), vr(KX + 16 * kt + 4 * ks, 4), vr(QF + 4 * ks, 4),
                                                            '0' if ks == 0 else vr(SX + 4 * kt, 4)))
    for ks in range(4):
        a.e('v_mfma_f32_16x16x32_bf16 %s, %s, %s, %s' % (vr(SM, 4), vr(KM + 4 * ks, 4), vr(QF + 4 * ks, 4), '0' if ks == 0 else vr(SM, 4)))
    for j in range(8):
        a.e('v_cndmask_b32 v%d, v15, v%d, %s' % (SX + j, SX + j, sr(64 + 2 * j, 2)))
    a.e('v_max3_f32 v%d, v%d, v%d, v%d' % (MX, SX, SX + 1, SX + 2))
    a.e('v_max3_f32 v%d, v%d, v%d, v%d' % (MX, MX, SX + 3, SX + 4))
    a.e('v_max3_f32 v%d, v%d, v%d, v%d' % (MX, MX, SX + 5, SX + 6))
    a.e('v_max3_f32 v%d, v%d, v%d, v%d' % (MX, MX, SX + 7, SM))
    a.e('v_max3_f32 v%d, v%d, v%d, v%d' % (MX, MX, SM + 1, SM + 2))
    a.e('v_max_f32 v%d, v%d, v%d' % (MX, MX, SM + 3))
    xl_reduce(a, 'v_max_f32', MX, T1, [32, 16])
    a.e('v_mul_f32 v%d, s83, v%d' % (NM, MX))
    for j in range(12):
        a.e('v_fma_f32 v%d, v%d, s82, v%d' % (SM + j, SM + j, NM))
    for j in range(12):
        a.e('v_exp_f32 v%d, v%d' % (SM + j, SM + j))
    a.e('v_add_f32 v%d, v%d, v%d' % (T0, SM, SM + 1))
    a.e('v_add_f32 v%d, v%d, v%d' % (T0, T0, SM + 2))
    a.e('v_add_f32 v%d, v%d, v%d' % (T0, T0, SM + 3))
    a.e('v_mul_f32 v%d, v%d, v14' % (L, T0))
    for j in range(8):
        a.e('v_add_f32 v%d, v%d, v%d' % (L, L, SX + j))
    for q in range(2):
        a.e('v_cvt_pk_bf16_f32 v%d, v%d, v%d' % (SM + q, SM + 2 * q, SM + 2 * q + 1))
    for q in range(4):
        a.e('v_cvt_pk_bf16_f32 v%d, v%d, v%d' % (SX + q, SX + 2 * q, SX + 2 * q + 1))
    xl_reduce(a, 'v_add_f32', L, T1, [32, 16])
    a.e('v_rcp_f32 v%d, v%d' % (L, L))
    a.e('s_waitcnt vmcnt(0)')
    for et in range(4):
        a.e('v_mfma_f32_16x16x32_bf16 %s, %s, %s, 0' % (vr(O + 4 * et, 4), vr(VT + 4 * et, 4), vr(SX, 4)))
    for et in range(4):
        a.e('v_mfma_f32_16x16x16_bf16 %s, %s, %s, %s' % (vr(O + 4 * et, 4), vr(VM + 2 * et, 2), vr(SM, 2), vr(O + 4 * et, 4)))
    for et in range(4):
        for r in range(4):
            a.e('v_mul_f32 v%d, v%d, v%d' % (O + 4 * et + r, O + 4 * et + r, L))
        a.e('v_cvt_pk_bf16_f32 v%d, v%d, v%d' % (O + 4 * et, O + 4 * et, O + 4 * et + 1))
        a.e('v_cvt_pk_bf16_f32 v%d, v%d, v%d' % (O + 4 * et + 1, O + 4 * et + 2, O + 4 * et + 3))
        a.e('ds_write_b64 v9, %s offset:%d' % (vr(O + 4 * et, 2), 1024 * et))
    a.e('s_waitcnt lgkmcnt(0)')
    a.e('s_barrier')
    for ks in range(8):
        a.e('ds_read_b128 %s, v8 offset:%d' % (vr(OF + 4 * ks, 4), 1024 * ks))
    a.e('''s_lshl_b32 s6, s%d, 20
    s_lshl_b32 s7, s3, 10
    s_add_u32 s6, s6, s7
    s_add_u32 s6, s6, %d''' % (seg, WS_OP))
    for mt in range(4):
        for ks in range(8):
            if mt == 0:
                a.e('s_waitcnt lgkmcnt(%d)' % (7 - ks))
            a.e('v_mfma_f32_32x32x16_bf16 %s, %s, %s, %s' % (vr(ACC + 16 * mt, 16), ar((mt * 8 + ks) * 4, 4), vr(OF + 4 * ks, 4),
                                                            '0' if ks == 0 else vr(ACC + 16 * mt, 16)))
    a.e('s_barrier')
    for mt in range(4):
        for cq in range(2):
            b = ACC + 16 * mt + 8 * cq
            for q in range(4):
                a.e('v_cvt_pk_bf16_f32 v%d, v%d, v%d' % (b + q, b + 2 * q, b + 2 * q + 1))
            a.e('buffer_store_dwordx4 %s, v10, s[52:55], s6 offen offset:%d sc1' % (vr(b, 4), 64 * mt + 32 * cq))


def n_prologue(a, base):
    a.e('''v_lshrrev_b32 v{t}, 1, v1
    v_lshlrev_b32 v{t}, 4, v{t}        ; 16*(cp>>1) = 32T+16c'
    v_and_b32 v{u}, 1, v1
    v_lshl_add_u32 v{t}, v{u}, 2, v{t}  ; col0
    v_lshlrev_b32 v{u}, 2, v{t}        ; f32 byte offset
    v_lshlrev_b32 v{t}, 1, v{t}        ; bf16 byte offset
    '''.format(t=base + 24, u=base + 25))
    for i, vec in enumerate((2, 4, 3)):
        a.e('s_mov_b32 s6, %d' % (WS_MODF + vec * 2048))
        a.e('buffer_load_dwordx4 %s, v%d, s[52:55], s6 offen sc1' % (vr(base + 8 * i, 4), base + 25))
        a.e('buffer_load_dwordx4 %s, v%d, s[52:55], s6 offen offset:32 sc1' % (vr(base + 8 * i + 4, 4), base + 25))


def wave_sum2(a, x, y, t):
    for r in (8, 4, 2, 1):
        a.e('v_add_f32_dpp v%d, v%d, v%d row_ror:%d row_mask:0xf bank_mask:0xf' % (t, x, x, r))
        a.e('v_add_f32_dpp v%d, v%d, v%d row_ror:%d row_mask:0xf bank_mask:0xf' % (t + 1, y, y, r))
        a.e('v_mov_b32 v%d, v%d' % (x, t))
        a.e('v_mov_b32 v%d, v%d' % (y, t + 1))
    for s in (16, 32):
        a.e('v_permlane%d_swap_b32 v%d, v%d' % (s, x, t))
        a.e('v_permlane%d_swap_b32 v%d, v%d' % (s, y, t + 1))
        a.e('v_add_f32 v%d, v%d, v%d' % (x, x, t))
        a.e('v_add_f32 v%d, v%d, v%d' % (y, y, t + 1))
        if s == 16:
            a.e('v_mov_b32 v%d, v%d' % (t, x))
            a.e('v_mov_b32 v%d, v%d' % (t + 1, y))


def ln8(a, X, S1, S2, T):
    a.e('v_add_f32 v%d, v%d, v%d' % (S1, X, X + 1))
    a.e('v_mul_f32 v%d, v%d, v%d' % (S2, X, X))
    a.e('v_fmac_f32 v%d, v%d, v%d' % (S2, X + 1, X + 1))
    for j in range(2, 8):
        a.e('v_add_f32 v%d, v%d, v%d' % (S1, S1, X + j))
        a.e('v_fmac_f32 v%d, v%d, v%d' % (S2, X + j, X + j))
    wave_sum2(a, S1, S2, T)
    a.e('''v_mul_f32 v{a}, {inv}, v{a}
    v_mul_f32 v{b}, {inv}, v{b}
    v_fma_f32 v{b}, -v{a}, v{a}, v{b}
    v_max_f32 v{b}, 0, v{b}
    v_add_f32 v{b}, {eps}, v{b}
    v_rsq_f32 v{b}, v{b}
    v_mul_f32 v{a}, v{a}, v{b}'''.format(a=S1, b=S2, inv=f32(1 / 512.), eps=f32(1e-5)))
    for j in range(8):
        a.e('v_fma_f32 v%d, v%d, v%d, -v%d' % (X + j, X + j, S2, S1))


def rnd(a, r):
    a.e('v_cvt_pk_bf16_f32 v%d, v%d, v%d' % (r, r, r))
    a.e('v_lshlrev_b32 v%d, 16, v%d' % (r, r))


def n_task(a, tok, base, W, lds_off, xs):
    GA, CB, SB, CO = base, base + 8, base + 16, base + 24
    a.e('''s_lshl_b32 s6, s%d, 15
    s_lshl_b32 s7, s4, 13
    s_add_u32 s6, s6, s7
    s_add_u32 s6, s6, %d
    s_add_u32 s7, s6, 4096
    s_lshl_b32 s8, s%d, 10''' % (tok, WS_OP, tok))
    for i in range(8):
        a.e('buffer_load_dwordx4 %s, v8, s[52:55], s%d offen offset:%d sc1' % (vr(W + 4 * i, 4), 6 if i < 4 else 7, 1024 * (i & 3)))
    XR = W + 44
    a.e('buffer_load_dwordx2 %s, v%d, %s, s8 offen' % (vr(XR, 2), CO, sr(xs, 4)))
    a.e('buffer_load_dwordx2 %s, v%d, %s, s8 offen offset:16' % (vr(XR + 2, 2), CO, sr(xs, 4)))
    ACC, T = W + 32, W + 40
    for i in range(8):
        a.e('s_waitcnt vmcnt(%d)' % (9 - i))
        for q in range(4):
            w = W + 4 * i + q
            if i == 0:
                a.e('v_lshlrev_b32 v%d, 16, v%d' % (ACC + 2 * q, w))
                a.e('v_and_b32 v%d, 0xffff0000, v%d' % (ACC + 2 * q + 1, w))
            else:
                a.e('v_lshlrev_b32 v%d, 16, v%d' % (T, w))
                a.e('v_and_b32 v%d, 0xffff0000, v%d' % (T + 1, w))
                a.e('v_add_f32 v%d, v%d, v%d' % (ACC + 2 * q, ACC + 2 * q, T))
                a.e('v_add_f32 v%d, v%d, v%d' % (ACC + 2 * q + 1, ACC + 2 * q + 1, T + 1))
    a.e('''s_lshl_b32 s7, s4, 11
    v_add_u32 v{t}, s7, v8
    ds_write_b128 v{t}, {a0} offset:{o0}
    ds_write_b128 v{t}, {a1} offset:{o1}
    s_waitcnt lgkmcnt(0)
    s_barrier'''.format(t=T, a0=vr(ACC, 4), a1=vr(ACC + 4, 4), o0=lds_off, o1=lds_off + 1024))
    skip = a.newlabel('N_skip')
    a.e('s_cmp_lg_u32 s4, 0')
    a.e('s_cbranch_scc1 %s' % skip)
    for w in range(1, 4):
        a.e('ds_read_b128 %s, v8 offset:%d' % (vr(W + 8 * w, 4), lds_off + 2048 * w))
        a.e('ds_read_b128 %s, v8 offset:%d' % (vr(W + 8 * w + 4, 4), lds_off + 2048 * w + 1024))
    a.e('s_waitcnt lgkmcnt(0)')
    a.e('s_waitcnt vmcnt(0)')
    for j in range(8):
        for w in range(1, 4):
            a.e('v_add_f32 v%d, v%d, v%d' % (ACC + j, ACC + j, W + 8 * w + j))
        rnd(a, ACC + j)
        a.e('v_mul_f32 v%d, v%d, v%d' % (ACC + j, ACC + j, GA + j))
        rnd(a, ACC + j)
        if j & 1:
            a.e('v_and_b32 v%d, 0xffff0000, v%d' % (T, XR + (j >> 1)))
        else:
            a.e('v_lshlrev_b32 v%d, 16, v%d' % (T, XR + (j >> 1)))
        a.e('v_add_f32 v%d, v%d, v%d' % (ACC + j, ACC + j, T))
    for q in range(4):
        a.e('v_cvt_pk_bf16_f32 v%d, v%d, v%d' % (W + q, ACC + 2 * q, ACC + 2 * q + 1))
    a.e('s_add_u32 s9, s8, %d' % WS_X1)
    a.e('buffer_store_dwordx2 %s, v%d, s[52:55], s9 offen sc1' % (vr(W, 2), CO))
    a.e('buffer_store_dwordx2 %s, v%d, s[52:55], s9 offen offset:16 sc1' % (vr(W + 2, 2), CO))
    for q in range(4):
        a.e('v_lshlrev_b32 v%d, 16, v%d' % (ACC + 2 * q, W + q))
        a.e('v_and_b32 v%d, 0xffff0000, v%d' % (ACC + 2 * q + 1, W + q))
    ln8(a, ACC, W + 8, W + 9, T)
    for j in range(8):
        a.e('v_fma_f32 v%d, v%d, v%d, v%d' % (ACC + j, ACC + j, CB + j, SB + j))
        rnd(a, ACC + j)
    ln8(a, ACC, W + 8, W + 9, T)
    for q in range(4):
        a.e('v_cvt_pk_bf16_f32 v%d, v%d, v%d' % (W + 4 + q, ACC + 2 * q, ACC + 2 * q + 1))
    a.e('s_add_u32 s9, s8, %d' % WS_H2)
    a.e('buffer_store_dwordx2 %s, v%d, s[52:55], s9 offen sc1' % (vr(W + 4, 2), CO))
    a.e('buffer_store_dwordx2 %s, v%d, s[52:55], s9 offen offset:16 sc1' % (vr(W + 6, 2), CO))
    a.e('%s:' % skip)


def role_g1(a, wait_seg=None):
    wave_id(a, 4, 1)
    lane_setup(a)
    srd(a, 56, P_W1)
    srd(a, 60, P_B1)
    ACC = 64
    a.e('''s_and_b32 s5, s3, 3              ; dt
    s_lshr_b32 s6, s3, 2             ; ft
    s_and_b32 s92, s4, 1             ; wd
    s_lshr_b32 s93, s4, 1            ; wf
    ; DMA: lane -> row G (+4i+8w), lds chunk n ; source chunk n ^ (G<<2)
    v_lshlrev_b32 v9, 2, v3
    v_xor_b32 v9, v9, v2
    v_lshlrev_b32 v9, 4, v9          ; src chunk*16
    s_lshl_b32 s7, s4, 3
    v_add_u32 v10, s7, v3            ; row 8w+G
    v_lshl_add_u32 v11, v10, 10, v9  ; h2 voffset: row*1024 + chunk
    s_movk_i32 s7, 3584
    v_mul_lo_u32 v12, v10, s7
    v_add_u32 v12, v12, v9           ; w1 voffset
    s_lshl_b32 s94, s5, 8
    s_add_u32 s94, s94, %d           ; h2 soffset base
    s_lshl_b32 s95, s6, 8            ; w1 soffset base
    s_lshl_b32 s96, s4, 11           ; lds wave part w*2048
    ; tr addresses: row (8 g2 + r)*256 + ((gamma ^ r)<<6) + (16(G&1) + 4c)*2
    v_lshl_add_u32 v13, v6, 3, v4
    v_lshlrev_b32 v13, 8, v13
    v_lshl_add_u32 v13, v7, 5, v13
    v_lshl_add_u32 v13, v5, 3, v13
    ''' % WS_H2)
    for i in range(2):
        a.e('''s_lshl_b32 s7, s92, 1
        s_add_u32 s7, s7, %d
        v_xor_b32 v14, s7, v4
        v_lshl_add_u32 v%d, v14, 6, v13
        s_lshl_b32 s7, s93, 1
        s_add_u32 s7, s7, %d
        v_xor_b32 v14, s7, v4
        v_lshl_add_u32 v%d, v14, 6, v13
        v_add_u32 v%d, 0x2000, v%d''' % (i, 16 + i, i, 18 + i, 18 + i, 18 + i))
    for j in range(0, 64, 2):
        a.e('v_mov_b64 %s, 0' % vr(ACC + j, 2))

    def dma(seg, slot):
        a.e('s_min_u32 s8, s%d, 63' % seg)
        a.e('s_lshl_b32 s9, s8, 15')
        a.e('s_add_u32 s9, s9, s94')
        a.e('s_mul_i32 s10, s8, %d' % (32 * 3584))
        a.e('s_add_u32 s10, s10, s95')
        a.e('s_lshl_b32 s11, s%d, 14' % slot)
        a.e('s_add_u32 s11, s11, s96')
        for i in range(2):
            a.e('s_add_u32 s12, s11, %d' % (8192 + 1024 * i))
            a.e('s_mov_b32 m0, s12')
            a.e('s_add_u32 s13, s10, %d' % (4 * 3584 * i))
            a.e('buffer_load_dwordx4 v12, s[56:59], s13 offen lds')
        if wait_seg:
            wait_seg(a, 8)
        for i in range(2):
            a.e('s_add_u32 s12, s11, %d' % (1024 * i))
            a.e('s_mov_b32 m0, s12')
            a.e('s_add_u32 s13, s9, %d' % (4096 * i))
            a.e('buffer_load_dwordx4 v11, s[52:55], s13 offen sc1 lds')

    DEPTH = 1 if wait_seg else 3
    a.e('s_mov_b32 s14, 0')
    a.e('s_mov_b32 s15, 0')
    for i in range(DEPTH):
        dma(14, 15)
        a.e('s_add_u32 s14, s14, 1')
        a.e('s_add_u32 s15, s15, 1')
    a.e('s_mov_b32 s97, 0')
    a.e('s_mov_b32 s98, 0')
    top = a.newlabel('G1_loop')
    a.e('%s:' % top)
    a.e('s_waitcnt vmcnt(%d)' % (4 * (DEPTH - 1)))
    a.e('s_barrier')
    a.e('s_lshl_b32 s8, s98, 14')
    for i in range(4):
        a.e('v_add_u32 v%d, s8, v%d' % (20 + i, 16 + i))
    for kk in range(2):
        for i in range(2):
            for rd in range(2):
                off = (16 * kk + 4 * rd) * 256
                a.e('ds_read_b64_tr_b16 %s, v%d offset:%d' % (vr(32 + 8 * kk + 4 * i + 2 * rd, 2), 20 + i, off))
                a.e('ds_read_b64_tr_b16 %s, v%d offset:%d' % (vr(48 + 8 * kk + 4 * i + 2 * rd, 2), 22 + i, off))
    if not wait_seg:
        dma(14, 15)
    for kk in range(2):
        a.e('s_waitcnt lgkmcnt(%d)' % (8 if kk == 0 else 0))
        for fi in range(2):
            for di in range(2):
                acc = vr(ACC + 16 * (2 * fi + di), 16)
                a.e('v_mfma_f32_32x32x16_bf16 %s, %s, %s, %s' % (acc, vr(48 + 8 * kk + 4 * fi, 4), vr(32 + 8 * kk + 4 * di, 4), acc))
    fin = a.newlabel('G1_fin')
    a.e('s_add_u32 s97, s97, 1')
    a.e('s_cmp_ge_u32 s97, 64')
    a.e('s_cbranch_scc1 %s' % fin)
    if wait_seg:
        dma(14, 15)
    a.e('s_add_u32 s14, s14, 1')
    a.e('s_add_u32 s15, s15, 1')
    a.e('s_and_b32 s15, s15, 3')
    a.e('s_add_u32 s98, s98, 1')
    a.e('s_and_b32 s98, s98, 3')
    a.e('s_branch %s' % top)
    a.e('%s:' % fin)
    a.e('''s_lshl_b32 s8, s6, 8
    s_lshl_b32 s9, s93, 7
    s_add_u32 s8, s8, s9
    v_lshlrev_b32 v20, 3, v6''')
    for fi in range(2):
        for aa in range(4):
            a.e('buffer_load_dwordx2 %s, v20, s[60:63], s8 offen offset:%d' % (vr(32 + 8 * fi + 2 * aa, 2), 64 * fi + 16 * aa))
    a.e('s_mov_b32 s10, %s' % f32(0.044715))
    a.e('s_mov_b32 s11, %s' % f32(-2 * 0.7978845608028654 * LOG2E))
    a.e('''s_lshl_b32 s8, s5, 2
    s_lshl_b32 s9, s92, 1
    s_add_u32 s8, s8, s9
    s_mul_i32 s8, s8, 112
    s_lshl_b32 s9, s6, 3
    s_add_u32 s8, s8, s9
    s_lshl_b32 s9, s93, 2
    s_add_u32 s8, s8, s9
    s_lshl_b32 s8, s8, 10
    s_add_u32 s8, s8, %d
    s_add_u32 s9, s8, %d
    s_waitcnt vmcnt(0)''' % (WS_U, 112 * 1024))
    for fi in range(2):
        for di in range(2):
            b = ACC + 16 * (2 * fi + di)
            for j in range(16):
                bw = 32 + 8 * fi + (j >> 1)
                x = b + j
                rnd(a, x)
                if j & 1:
                    a.e('v_and_b32 v21, 0xffff0000, v%d' % bw)
                else:
                    a.e('v_lshlrev_b32 v21, 16, v%d' % bw)
                a.e('v_add_f32 v%d, v%d, v21' % (x, x))
                rnd(a, x)
                a.e('v_mul_f32 v21, v%d, v%d' % (x, x))
                a.e('v_fma_f32 v21, v21, s10, 1.0')
                a.e('v_mul_f32 v21, v21, v%d' % x)
                a.e('v_mul_f32 v21, s11, v21')
                a.e('v_exp_f32 v21, v21')
                a.e('v_add_f32 v21, 1.0, v21')
                a.e('v_rcp_f32 v21, v21')
                a.e('v_mul_f32 v%d, v%d, v21' % (x, x))
            for cq in range(2):
                bb = b + 8 * cq
                for q in range(4):
                    a.e('v_cvt_pk_bf16_f32 v%d, v%d, v%d' % (bb + q, bb + 2 * q, bb + 2 * q + 1))
                a.e('buffer_store_dwordx4 %s, v8, s[52:55], s%d offen offset:%d sc1' % (vr(bb, 4), 8 + di, 1024 * (2 * fi + cq)))
    a.e('s_waitcnt vmcnt(0)')
    a.e('s_barrier')


def role_g2_v1(a):
    wave_id(a, 4, 1)
    lane_setup(a)
    srd(a, 56, P_W2)
    srd(a, 60, P_B2)
    srd(a, 64, P_OUT)
    ACC = 64
    a.e('''s_and_b32 s5, s3, 7
    s_lshr_b32 s6, s3, 3
    s_and_b32 s92, s4, 1
    s_lshr_b32 s93, s4, 1
    ; DMA: 1KB = 8 rows of 128B: lane -> row l>>3, chunk l&7 ; wave w rows 16w + 8i + (l>>3)
    ; swizzle: lds 64B-half index hb = (chunk>>2) ; rows r&3 -> bank group (2*(row&1) + hb) ^ ... use source chunk ^ (((row>>1)&1)<<2)
    v_lshrrev_b32 v9, 3, v1          ; row in 8
    v_and_b32 v10, 7, v1
    v_lshrrev_b32 v11, 1, v9
    v_and_b32 v11, 1, v11
    v_lshlrev_b32 v11, 2, v11
    v_xor_b32 v10, v10, v11
    s_lshl_b32 s7, s4, 4
    v_add_u32 v9, s7, v9
    v_lshlrev_b32 v9, 12, v9
    v_lshl_add_u32 v9, v10, 4, v9    ; w2 voffset
    s_lshl_b32 s94, s6, 7            ; st*128 bytes
    s_lshl_b32 s96, s4, 11
    ; tr addr: rows f = 16kk + 8jj + 4g2 + r ; (4g2 + r)*128 + ((ws ^ (r>>1))<<6) + (16(G&1)+4c)*2
    v_lshl_add_u32 v12, v6, 2, v4
    v_lshlrev_b32 v12, 7, v12
    v_lshl_add_u32 v12, v7, 5, v12
    v_lshl_add_u32 v12, v5, 3, v12
    v_lshrrev_b32 v13, 1, v4
    v_xor_b32 v13, s93, v13
    v_lshl_add_u32 v12, v13, 6, v12
    ; U base: (2dt + wd)*112*1024
    s_lshl_b32 s7, s5, 1
    s_add_u32 s7, s7, s92
    s_mul_i32 s95, s7, %d
    s_add_u32 s95, s95, %d
    ''' % (112 * 1024, WS_U))
    NS = 4

    def load(ch, slot_static):
        a.e('s_min_u32 s8, s%d, 27' % ch)
        a.e('s_lshl_b32 s9, s8, 18')
        a.e('s_add_u32 s9, s9, s94')
        a.e('s_add_u32 s11, s96, %d' % (8192 * slot_static))
        for i in range(2):
            a.e('s_add_u32 s12, s11, %d' % (1024 * i))
            a.e('s_mov_b32 m0, s12')
            a.e('s_add_u32 s13, s9, %d' % (8 * 4096 * i))
            a.e('buffer_load_dwordx4 v9, s[56:59], s13 offen lds')
        a.e('s_lshl_b32 s10, s8, 12')
        a.e('s_add_u32 s10, s10, s95')
        for kk in range(4):
            a.e('buffer_load_dwordx4 %s, v8, s[52:55], s10 offen offset:%d sc1' % (vr(80 + 16 * slot_static + 4 * kk, 4), 1024 * kk))

    for j in range(0, 16, 2):
        a.e('v_mov_b64 %s, 0' % vr(ACC + j, 2))
    a.e('s_mov_b32 s14, 0')
    for i in range(3):
        load(14, i)
        a.e('s_add_u32 s14, s14, 1')
    a.e('s_mov_b32 s97, 0')
    top = a.newlabel('G2_loop')
    a.e('%s:' % top)
    for sl in range(NS):
        a.e('s_waitcnt vmcnt(12)')
        a.e('s_barrier')
        for kk in range(4):
            for jj in range(2):
                a.e('ds_read_b64_tr_b16 %s, v12 offset:%d' % (vr(32 + 4 * kk + 2 * jj, 2), 8192 * sl + (16 * kk + 8 * jj) * 128))
        load(14, (sl + 3) % NS)
        a.e('s_add_u32 s14, s14, 1')
        for kk in range(4):
            a.e('s_waitcnt lgkmcnt(%d)' % (6 - 2 * kk))
            a.e('v_mfma_f32_32x32x16_bf16 %s, %s, %s, %s' % (vr(ACC, 16), vr(80 + 16 * sl + 4 * kk, 4), vr(32 + 4 * kk, 4), vr(ACC, 16)))
    a.e('s_add_u32 s97, s97, 1')
    a.e('s_cmp_lt_u32 s97, 7')
    a.e('s_cbranch_scc1 %s' % top)
    g2_epilogue(a, ACC, 5, 6, 92, 93)


def g2_epilogue(a, ACC, dt, st, wd, ws):
    a.e('''s_waitcnt vmcnt(0)
    v_and_b32 v20, 31, v1
    s_lshl_b32 s8, s{st}, 6
    s_lshl_b32 s9, s{ws}, 5
    s_add_u32 s8, s8, s9
    v_add_u32 v20, s8, v20           ; s'
    v_lshlrev_b32 v21, 1, v20
    buffer_load_ushort v22, v21, s[60:63], 0 offen
    s_lshl_b32 s8, s{dt}, 6
    s_lshl_b32 s9, s{wd}, 5
    s_add_u32 s8, s8, s9             ; d0
    v_lshlrev_b32 v21, 10, v20
    v_lshl_add_u32 v21, v6, 3, v21   ; row*1024 + g2*8
    s_lshl_b32 s9, s8, 1
    s_add_u32 s10, s9, {x1}
    v_lshlrev_b32 v23, 4, v6         ; g2*16 (f32)
    s_lshl_b32 s11, s8, 2
    s_add_u32 s11, s11, {gb}
    '''.format(st=st, ws=ws, dt=dt, wd=wd, x1=WS_X1, gb=WS_MODF + 5 * 2048))
    for aa in range(4):
        a.e('buffer_load_dwordx2 %s, v21, s[52:55], s10 offen offset:%d sc1' % (vr(24 + 2 * aa, 2), 16 * aa))
        a.e('buffer_load_dwordx4 %s, v23, s[52:55], s11 offen offset:%d sc1' % (vr(32 + 4 * aa, 4), 32 * aa))
    a.e('s_waitcnt vmcnt(0)')
    a.e('v_lshlrev_b32 v22, 16, v22')
    for j in range(16):
        x = ACC + j
        rnd(a, x)
        a.e('v_add_f32 v%d, v%d, v22' % (x, x))
        rnd(a, x)
        a.e('v_mul_f32 v%d, v%d, v%d' % (x, x, 32 + j))
        rnd(a, x)
        if j & 1:
            a.e('v_and_b32 v20, 0xffff0000, v%d' % (24 + (j >> 1)))
        else:
            a.e('v_lshlrev_b32 v20, 16, v%d' % (24 + (j >> 1)))
        a.e('v_add_f32 v%d, v%d, v20' % (x, x))
    for aa in range(4):
        b = ACC + 4 * aa
        a.e('v_cvt_pk_bf16_f32 v%d, v%d, v%d' % (b, b, b + 1))
        a.e('v_cvt_pk_bf16_f32 v%d, v%d, v%d' % (b + 1, b + 2, b + 3))
        a.e('buffer_store_dwordx2 %s, v21, s[64:67], s9 offen offset:%d' % (vr(b, 2), 16 * aa))
    a.e('s_waitcnt vmcnt(0)')


def add_v1(a, add):
    def a_body(n):
        a.e('s_lshr_b32 s90, s3, 5')
        a.e('s_and_b32 s3, s3, 31')
        a_prologue(a)
        top = a.newlabel('A_loop')
        a.e('%s:' % top)
        a_segment(a, 90)
        a.e('s_add_u32 s90, s90, 8')
        a.e('s_cmp_lt_u32 s90, 64')
        a.e('s_cbranch_scc1 %s' % top)
        a.e('s_waitcnt vmcnt(0)')
    add('a_kernel', 256, 131072, a_body)

    def n_body(n):
        wave_id(a, 4, 1)
        lane_setup(a)
        srd(a, 56, P_X)
        n_prologue(a, 16)
        n_task(a, 3, 16, 48, 0, 56)
        a.e('s_waitcnt vmcnt(0)')
    add('n_kernel', 2048, 8192, n_body, 96, 96)
    add('g1_kernel', 56, 65536, lambda n: role_g1(a), 128, 128)
    add('g2_kernel', 256, 32768, lambda n: role_g2_v1(a), 144, 144)
```

```python
import sys, os
sys.path.insert(0, os.path.dirname(os.path.abspath(__file__)))
from common import *
import gen
a = Asm()
name = 'mb_kernel'
gen.kernel_begin(a, name, 1)
srd(a, 56, P_OUT)
wave_id(a, 4, 1)
a.e('v_lshlrev_b32 v100, 4, v0')
a.e('v_lshlrev_b32 v104, 3, v0')
a.e('v_mov_b32 v101, 0x4444')
for i in range(0, 100): a.e('v_mov_b32 v%d, 0' % i)
for i in range(105, 256): a.e('v_mov_b32 v%d, 0' % i)
for i in range(0, 256): a.e('v_accvgpr_write_b32 a%d, 0' % i)
tests = []
def T(nm, body, pre=None, post=None):
    idx = len(tests); tests.append(nm)
    lab = a.newlabel('T')
    a.e('s_mov_b32 s64, 0')
    a.e('%s:' % lab)
    a.e('s_nop 15')
    a.e('s_barrier')
    if pre: pre()
    a.e('s_memtime s[60:61]'); a.e('s_waitcnt lgkmcnt(0)')
    body()
    a.e('s_waitcnt lgkmcnt(0)')
    a.e('s_memtime s[62:63]'); a.e('s_waitcnt lgkmcnt(0)')
    a.e('s_add_u32 s64, s64, 1'); a.e('s_cmp_lt_u32 s64, 4'); a.e('s_cbranch_scc1 %s' % lab)
    a.e('s_sub_u32 s62, s62, s60')
    a.e('s_lshl_b32 s63, s4, 2')
    a.e('v_mov_b32 v102, s62'); a.e('v_mov_b32 v103, s63')
    a.e('buffer_store_dword v102, v103, s[56:59], 0 offen offset:%d' % (16 * idx))
adds = lambda n: (lambda: [a.e('v_add_f32 v%d, v%d, v%d' % (64 + (i & 3), 70, 80)) for i in range(n)])
T('empty', lambda: None)
def smf(acc, A, B): return 'v_smfmac_f32_16x16x64_bf16 %s, %s, %s, v101' % (vr(acc, 4), A, B)
def mf(acc, A, B): return 'v_mfma_f32_16x16x32_bf16 %s, %s, %s, %s' % (vr(acc, 4), A, B, vr(acc, 4))
def f(fill, dense=False, tail=8):
    def b():
        for i in range(12): a.e(smf(56 + 4 * (i & 1), vr(4 * (i >> 1), 4), ar(8 * i, 8)))
        for i in range(16):
            if dense: a.e(mf(56 + 4 * (i & 1), vr(4 * (i >> 1), 4), ar(8 * i, 4)))
            else: a.e(smf(56 + 4 * (i & 1), vr(4 * (i >> 1), 4), ar(8 * i, 8)))
            for x in fill(i): a.e(x)
        for i in range(tail): a.e(smf(56 + 4 * (i & 1), vr(4 * (i >> 1), 4), ar(8 * i, 8)))
    return b
ADD = 'v_add_f32 v64, v70, v80'
tr = lambda i: 'ds_read_b64_tr_b16 %s, v104 offset:%d' % (vr(128 + 2 * i, 2), 2048 * (i & 7))
tra = lambda i: 'ds_read_b64_tr_b16 %s, v104 offset:%d' % (ar(200 + 2 * i, 2), 2048 * (i & 7))
b128 = lambda i: 'ds_read_b128 %s, v100 offset:%d' % (vr(128 + 4 * i, 4), 4096 * (i & 7))
T('base 36 smf', f(lambda i: []))
T('tr', f(lambda i: [tr(i)]))
T('tr agpr', f(lambda i: [tra(i)]))
T('b128', f(lambda i: [b128(i)]))
T('2 tr', f(lambda i: [tr(i), tr(i + 16)]))
T('add,tr', f(lambda i: [ADD, tr(i)]))
T('tr,add', f(lambda i: [tr(i), ADD]))
T('add,b128', f(lambda i: [ADD, b128(i)]))
T('b128,add', f(lambda i: [b128(i), ADD]))
T('alt add / tr', f(lambda i: [ADD] if i & 1 else [tr(i)]))
T('alt add / 2tr', f(lambda i: [ADD] if i & 1 else [tr(i), tr(i + 16)]))
T('alt add / b128', f(lambda i: [ADD] if i & 1 else [b128(i)]))
T('alt 2add / b128', f(lambda i: [ADD, ADD] if i & 1 else [b128(i)]))
T('first8 b128x2, last8 add', f(lambda i: [ADD] if i >= 8 else [b128(2 * i), b128(2 * i + 1)]))
T('dense add,tr', f(lambda i: [ADD, tr(i)], True))
T('dense tr,add', f(lambda i: [tr(i), ADD], True))
T('dense add,add,tr', f(lambda i: [ADD, ADD, tr(i)], True))
T('dense tr', f(lambda i: [tr(i)], True))
T('add,salu', f(lambda i: [ADD, 's_add_u32 s70, s70, 1']))
T('add,wait', f(lambda i: [ADD, 's_waitcnt lgkmcnt(8)']))
T('wait,add', f(lambda i: ['s_waitcnt lgkmcnt(8)', ADD]))
T('salu,salu,add', f(lambda i: ['s_add_u32 s70, s70, 1', 's_add_u32 s70, s70, 1', ADD]))
T('tr,wait', f(lambda i: [tr(i), 's_waitcnt lgkmcnt(8)']))
T('tr,salu', f(lambda i: [tr(i), 's_add_u32 s70, s70, 1']))
T('salu x3', f(lambda i: ['s_add_u32 s70, s70, 1'] * 3))
T('salu x4', f(lambda i: ['s_add_u32 s70, s70, 1'] * 4))
def novf(fill):
    def b():
        for i in range(12): a.e(smf(56 + 4 * (i & 1), vr(4 * (i >> 1), 4), ar(8 * i, 8)))
        for i in range(16):
            for x in fill(i): a.e(x)
    return b
T('nomfma: 16x(add,add,add,tr)', novf(lambda i: [ADD, ADD, ADD, tr(i)]))
T('nomfma: 16x(add,add,add,add)', novf(lambda i: [ADD, ADD, ADD, ADD]))
a.e('s_waitcnt vmcnt(0)')
gen.kernel_end(a, name)
txt = gen.HEADER + '; @launch kernel=%s grid=(1,1,1) block=(256,1,1) lds=65536\n' % name + '.amdgcn_target "amdgcn-amd-amdhsa--gfx950"\n.text\n' + a.text()
txt += '.section .rodata,"a"\n.p2align 6\n' + gen.descriptor(name)
open('mb.s', 'w').write(txt)
open('mb.names', 'w').write('\n'.join(tests))
print(len(tests), 'tests; nops', a.nops_added)
```
